```python
import torch

def _softmax(x, axis=-1):
    return torch.softmax(x, dim=axis)
def _gelu(x):
    return torch.nn.functional.gelu(x, approximate="tanh")
def _silu(x):
    return torch.nn.functional.silu(x)
def _sigmoid(x):
    return torch.sigmoid(x)
def _layernorm(x, axis=-1, eps=1e-5):
    m = x.mean(dim=axis, keepdim=True)
    v = x.var(dim=axis, keepdim=True, unbiased=False)
    return (x - m) / torch.sqrt(v + eps)
def _scatter_add(tgt, idx, src, axis=0):
    return tgt.clone().index_add_(axis, idx, src)
def _segment_sum(src, seg, n):
    out = torch.zeros((n,) + src.shape[1:], dtype=src.dtype)
    return out.index_add_(0, seg, src)
def _pad(x, pw):
    flat = tuple(v for pair in reversed(pw) for v in pair)
    return torch.nn.functional.pad(x, flat)

kernel_name = 'gated_mix__ssm_conv_s5__ssm_conv_s4__prompt'

def setup_inputs():

    _w = (lambda a: (lambda t: t.to(torch.bfloat16) if t.is_floating_point() else t)(torch.as_tensor(a)))
    def _A_setup():
        B, S, D = 1, 2048, 640
        P = D
        Lambda_re = -0.5 * (lambda _x: torch.exp(torch.as_tensor(_x)))((lambda *s: torch.randn(*s, dtype=torch.bfloat16) * 0.2)(P))
        Lambda_im = (lambda *s: torch.randn(*s, dtype=torch.bfloat16) * 0.4)(P) * 1.0
        B_re = (lambda *s: torch.randn(*s, dtype=torch.bfloat16) * 0.2)(P, D) * (D ** -0.5)
        B_im = (lambda *s: torch.randn(*s, dtype=torch.bfloat16) * 0.2)(P, D) * (D ** -0.5)
        C_re = (lambda *s: torch.randn(*s, dtype=torch.bfloat16) * 0.2)(D, P) * (P ** -0.5)
        C_im = (lambda *s: torch.randn(*s, dtype=torch.bfloat16) * 0.2)(D, P) * (P ** -0.5)
        log_dt = (lambda *s: torch.randn(*s, dtype=torch.bfloat16) * 0.2)(P) * 0.3 - 2.0
        Dskip = (lambda *s: torch.randn(*s, dtype=torch.bfloat16) * 0.05)(D)
        return {
            "x": _w((lambda *s: torch.randn(*s, dtype=torch.bfloat16) * 0.05)(B, S, D)),
            "Lambda_re": _w(Lambda_re),
            "Lambda_im": _w(Lambda_im),
            "B_re": _w(B_re),
            "B_im": _w(B_im),
            "C_re": _w(C_re),
            "C_im": _w(C_im),
            "log_dt": _w(log_dt),
            "Dskip": _w(Dskip),
        }
    _A_in = _A_setup()

    def _B_setup():
        B, L, D, N = 1, 2048, 640, 128
        A_re = -(lambda _x: torch.exp(torch.as_tensor(_x)))((lambda *s: torch.randn(*s, dtype=torch.bfloat16) * 3.2)(D, N))
        A_im = torch.pi * (lambda *s: torch.randn(*s, dtype=torch.bfloat16) * 0.05)(D, N)
        B_re = (lambda *s: torch.randn(*s, dtype=torch.bfloat16) * 0.1)(D, N)
        B_im = (lambda *s: torch.randn(*s, dtype=torch.bfloat16) * 0.1)(D, N)
        C_re = (lambda *s: torch.randn(*s, dtype=torch.bfloat16) * 0.1)(D, N)
        C_im = (lambda *s: torch.randn(*s, dtype=torch.bfloat16) * 0.1)(D, N)
        log_dt = (lambda *s: torch.randn(*s, dtype=torch.bfloat16) * 0.05)(D) * 0.5 - 4.0
        Dskip = (lambda *s: torch.randn(*s, dtype=torch.bfloat16) * 0.05)(D)
        return {
            "u": _w((lambda *s: torch.randn(*s, dtype=torch.bfloat16) * 0.05)(B, L, D)),
            "A_re": _w(A_re),
            "A_im": _w(A_im),
            "B_re": _w(B_re),
            "B_im": _w(B_im),
            "C_re": _w(C_re),
            "C_im": _w(C_im),
            "log_dt": _w(log_dt),
            "Dskip": _w(Dskip),
        }
    _B_in = _B_setup()

    return {
        "A_x": _A_in["x"],
        "A_Lambda_re": _A_in["Lambda_re"],
        "A_Lambda_im": _A_in["Lambda_im"],
        "A_B_re": _A_in["B_re"],
        "A_B_im": _A_in["B_im"],
        "A_C_re": _A_in["C_re"],
        "A_C_im": _A_in["C_im"],
        "A_log_dt": _A_in["log_dt"],
        "A_Dskip": _A_in["Dskip"],
        "B_u": _B_in["u"],
        "B_A_re": _B_in["A_re"],
        "B_A_im": _B_in["A_im"],
        "B_B_re": _B_in["B_re"],
        "B_B_im": _B_in["B_im"],
        "B_C_re": _B_in["C_re"],
        "B_C_im": _B_in["C_im"],
        "B_log_dt": _B_in["log_dt"],
        "B_Dskip": _B_in["Dskip"],
        "gate_w": _w((lambda *s: torch.randn(*s, dtype=torch.bfloat16) * 0.05)(640) * 16.0),
    }

def reference(A_x, A_Lambda_re, A_Lambda_im, A_B_re, A_B_im, A_C_re, A_C_im, A_log_dt, A_Dskip, B_u, B_A_re, B_A_im, B_B_re, B_B_im, B_C_re, B_C_im, B_log_dt, B_Dskip, gate_w):
    def _A_ref(x, Lambda_re, Lambda_im, B_re, B_im, C_re, C_im, log_dt, Dskip):
        Bsz, L, H = x.shape
        Lam = Lambda_re + 1j * Lambda_im
        Bmat = B_re + 1j * B_im
        Cmat = C_re + 1j * C_im
        dt = torch.exp(log_dt)
        Lam_bar = torch.exp(dt * Lam)
        B_bar = ((Lam_bar - 1.0) / Lam)[:, None] * Bmat
        Bu = torch.einsum("bld,pd->blp", x + 0j, B_bar)
        h = torch.zeros_like(Bu[:, 0, :])
        hs = []
        for t in range(L):
            h = Lam_bar[None, :] * h + Bu[:, t, :]
            hs.append(h)
        hseq = torch.stack(hs, 1)
        y = 2.0 * torch.einsum("blp,dp->bld", hseq, Cmat).real + x * Dskip[None, None, :]
        return y

    def _B_ref(u, A_re, A_im, B_re, B_im, C_re, C_im, log_dt, Dskip):
        Bsz, L, D = u.shape
        dt = torch.exp(log_dt)[:, None]
        A = A_re + 1j * A_im
        Bc = B_re + 1j * B_im
        Cc = C_re + 1j * C_im
        logdA = dt * A
        dB = dt * Bc
        l = (lambda x, dt: x.to(dt))(torch.arange(L), A_re.dtype)
        P = torch.exp(logdA[:, :, None] * l[None, None, :])
        K = torch.einsum("dn,dnl,dn->dl", Cc, P, dB).real
        L2 = 2 * L
        Kp = _pad(K, ((0, 0), (0, L)))
        up = (lambda x, *d: x.permute(*d))(u, 0, 2, 1)
        up = _pad(up, ((0, 0), (0, 0), (0, L)))
        Kf = (lambda x, axes=(-2,-1): torch.fft.rfft2(x.float(), dim=axes))(Kp[:, None, :], axes=(-2, -1))
        Uf = (lambda x, axes=(-2,-1): torch.fft.rfft2(x.float(), dim=axes))(up[:, :, None, :], axes=(-2, -1))
        Yf = Uf * Kf[None, :, :, :]
        y = (lambda x, s, axes=(-2,-1): torch.fft.irfft2(x, s=s, dim=axes).to(torch.bfloat16))(Yf, (1, L2), axes=(-2, -1))[:, :, 0, :L]
        y = (lambda x, *d: x.permute(*d))(y, 0, 2, 1) + u * Dskip[None, None, :]
        return y

    x = A_x
    g = _sigmoid((x * gate_w).sum(-1, keepdims=True))
    a = _A_ref(x, A_Lambda_re, A_Lambda_im, A_B_re, A_B_im, A_C_re, A_C_im, A_log_dt, A_Dskip)
    b = _B_ref(x, B_A_re, B_A_im, B_B_re, B_B_im, B_C_re, B_C_im, B_log_dt, B_Dskip)
    return g * a + (1 - g) * b
```

```python
import struct

NAME = "gated_mix__ssm_conv_s5__ssm_conv_s4__prompt"

ARG = dict(x=0, Lre=8, Lim=16, ABre=24, ABim=32, ACre=40, ACim=48, Aldt=56, ADsk=64, Bu=72,
           BAre=80, BAim=88, BBre=96, BBim=104, BCre=112, BCim=120, Bldt=128, BDsk=136, gw=144,
           out=152, dbg=160, ws=168)
SIZE = dict(x=2048*640*2, Lre=1280, Lim=1280, ABre=640*640*2, ABim=640*640*2, ACre=640*640*2, ACim=640*640*2,
            Aldt=1280, ADsk=1280, Bu=2048*640*2, BAre=640*128*2, BAim=640*128*2, BBre=640*128*2, BBim=640*128*2,
            BCre=640*128*2, BCim=640*128*2, Bldt=1280, BDsk=1280, gw=1280, out=2048*640*4, dbg=256, ws=268435456)

def f2u(x):
    return struct.unpack("<I", struct.pack("<f", x))[0]

def v(i, n=1):
    return f"v{i}" if n == 1 else f"v[{i}:{i+n-1}]"
def s(i, n=1):
    return f"s{i}" if n == 1 else f"s[{i}:{i+n-1}]"
def a(i, n=1):
    return f"a{i}" if n == 1 else f"a[{i}:{i+n-1}]"

class Kern:
    def __init__(self, name, grid, block, lds=0, vgpr=256, sgpr=102, accum=None):
        self.name = name; self.grid = grid; self.block = block; self.lds = lds
        self.vgpr = vgpr; self.sgpr = sgpr; self.accum = accum
        self.lines = []
        self.nlab = 0
    def __call__(self, txt):
        for l in txt.split("\n"):
            l = l.strip()
            if l:
                self.lines.append(l if l.endswith(":") else "    " + l)
    def label(self, base="L"):
        self.nlab += 1
        return f"{self.name}_{base}{self.nlab}"
    def srd(self, dst, arg, size=None, off=0):
        size = SIZE[arg] if size is None else size
        self(f"s_load_dwordx2 s[{dst}:{dst+1}], s[0:1], {ARG[arg]}")
        return (dst, size, off)
    def srd_fin(self, items):
        self("s_waitcnt lgkmcnt(0)")
        for dst, size, off in items:
            if off:
                self(f"s_add_u32 s{dst}, s{dst}, {off}")
                self(f"s_addc_u32 s{dst+1}, s{dst+1}, 0")
            self(f"s_mov_b32 s{dst+2}, {size}")
            self(f"s_mov_b32 s{dst+3}, 0x20000")
    def text(self):
        out = [".text", f".globl {self.name}", ".p2align 8", f".type {self.name},@function", f"{self.name}:"]
        out += self.lines
        return "\n".join(out)
    def desc(self):
        acc = self.accum if self.accum is not None else ((self.vgpr + 3) // 4) * 4
        acc = min(acc, 256)
        return "\n".join([
            f".amdhsa_kernel {self.name}",
            f"  .amdhsa_next_free_vgpr {self.vgpr}",
            f"  .amdhsa_next_free_sgpr {self.sgpr}",
            f"  .amdhsa_accum_offset {acc}",
            "  .amdhsa_group_segment_fixed_size 0",
            "  .amdhsa_kernarg_size 176",
            "  .amdhsa_user_sgpr_count 2",
            "  .amdhsa_user_sgpr_kernarg_segment_ptr 1",
            "  .amdhsa_system_sgpr_workgroup_id_x 1",
            "  .amdhsa_float_denorm_mode_32 3",
            ".end_amdhsa_kernel"])

HEADER = open("cdna_kernels/" + NAME + ".s.ref").read().split("; Override launch")[0]

def build(kernels, launches, path):
    out = [HEADER.rstrip("\n")]
    for k in launches:
        out.append(f"; @launch kernel={k.name} grid=({k.grid},1,1) block=({k.block},1,1) lds={k.lds}")
    out.append('.amdgcn_target "amdgcn-amd-amdhsa--gfx950"')
    for k in kernels:
        out.append(k.text())
    out.append('.section .rodata,"a"')
    for k in kernels:
        out.append(".p2align 6")
        out.append(k.desc())
    open(path, "w").write("\n".join(out) + "\n")
```

```python
import sys, math
from asmlib import *
LOG2E = f2u(1.4426950408889634); INV2PI = f2u(0.15915494309189535)
WS_ZR = 0; WS_ZI = 2048*640*4; WS_K = 2*2048*640*4
NEL = 2048*640

def tid_split(k):
    k("s_lshl_b32 s3, s2, 8")
    k("v_add_u32 v1, s3, v0")
    k("v_lshrrev_b32 v2, 7, v1")
    k("v_mul_u32_u24 v2, 52429, v2")
    k("v_lshrrev_b32 v2, 18, v2")
    k("v_mul_u32_u24 v3, 640, v2")
    k("v_sub_u32 v3, v1, v3")

def guard(k, limit_wg):
    k(f"s_cmp_ge_u32 s2, {limit_wg}")
    k(f"s_cbranch_scc1 {k.name}_end")

def lo(k, d, src):
    k(f"v_lshlrev_b32 v{d}, 16, v{src}")
def hi(k, d, src):
    k(f"v_and_b32 v{d}, 0xffff0000, v{src}")

k1 = Kern("n1_kernel", 5120, 256, vgpr=32)
k = k1
guard(k, 5120)
its = [k.srd(8, "x"), k.srd(12, "ABre"), k.srd(16, "ABim"), k.srd(20, "ws")]
k.srd_fin(its)
tid_split(k)
k("v_mul_u32_u24 v4, 1280, v2")
k("v_mul_u32_u24 v5, 1280, v3")
k("v_mov_b32 v10, 0\nv_mov_b32 v11, 0")
k("s_mov_b32 s4, 0")
L = k.label()
k(f"{L}:")
k("buffer_load_dword v6, v4, s[8:11], s4 offen")
k("buffer_load_dword v7, v5, s[12:15], s4 offen")
k("buffer_load_dword v8, v5, s[16:19], s4 offen")
k("s_waitcnt vmcnt(0)")
lo(k, 12, 6); lo(k, 13, 7); lo(k, 14, 8)
k("v_fmac_f32 v10, v12, v13\nv_fmac_f32 v11, v12, v14")
hi(k, 12, 6); hi(k, 13, 7); hi(k, 14, 8)
k("v_fmac_f32 v10, v12, v13\nv_fmac_f32 v11, v12, v14")
k("s_add_u32 s4, s4, 4\ns_cmp_lt_u32 s4, 1280")
k(f"s_cbranch_scc1 {L}")
k("v_lshlrev_b32 v1, 2, v1")
k(f"s_mov_b32 s4, {WS_ZI}")
k("buffer_store_dword v10, v1, s[20:23], 0 offen")
k("buffer_store_dword v11, v1, s[20:23], s4 offen")
k(f"{k.name}_end:\ns_endpgm")

def ld_bf16(k, dst, voff, srd):
    k(f"buffer_load_ushort v{dst}, v{voff}, s[{srd}:{srd+3}], 0 offen")

def rnd_bf16(k, r):
    k(f"v_cvt_pk_bf16_f32 v{r}, v{r}, v{r}")
    k(f"v_lshlrev_b32 v{r}, 16, v{r}")

def cexp(k, dr, di, xr, xi, t0, t1):
    k(f"v_mul_f32 v{t0}, {hex(LOG2E)}, v{xr}")
    k(f"v_exp_f32 v{t0}, v{t0}")
    k(f"v_mul_f32 v{t1}, {hex(INV2PI)}, v{xi}")
    k(f"v_fract_f32 v{t1}, v{t1}")
    k(f"v_cos_f32 v{dr}, v{t1}")
    k(f"v_sin_f32 v{di}, v{t1}")
    k("s_nop 0")
    k(f"v_mul_f32 v{dr}, v{dr}, v{t0}")
    k(f"v_mul_f32 v{di}, v{di}, v{t0}")

k2 = Kern("n2_kernel", 10, 64, vgpr=40)
k = k2
guard(k, 10)
its = [k.srd(8, "Lre"), k.srd(12, "Lim"), k.srd(16, "Aldt"), k.srd(20, "ws")]
k.srd_fin(its)
k("s_lshl_b32 s3, s2, 6")
k("v_add_u32 v1, s3, v0")
k("v_lshlrev_b32 v2, 1, v1")
ld_bf16(k, 4, 2, 8); ld_bf16(k, 5, 2, 12); ld_bf16(k, 6, 2, 16)
k("s_waitcnt vmcnt(0)")
lo(k, 4, 4); lo(k, 5, 5); lo(k, 6, 6)
k(f"v_mul_f32 v6, {hex(LOG2E)}, v6\nv_exp_f32 v6, v6\ns_nop 0")
rnd_bf16(k, 6)
k("v_mul_f32 v7, v6, v4\nv_mul_f32 v8, v6, v5")
cexp(k, 10, 11, 7, 8, 12, 13)
k("v_add_f32 v12, -1.0, v10")
k("v_mul_f32 v13, v4, v4\nv_fmac_f32 v13, v5, v5\nv_rcp_f32 v13, v13")
k("v_mul_f32 v14, v12, v4\nv_fmac_f32 v14, v11, v5")
k("v_mul_f32 v15, v11, v4\nv_fma_f32 v15, -v12, v5, v15")
k("v_mul_f32 v14, v14, v13\nv_mul_f32 v15, v15, v13")
k("v_mov_b32 v16, 0\nv_mov_b32 v17, 0")
k("v_lshlrev_b32 v2, 2, v1")
k("s_mov_b32 s4, 0")
k(f"s_mov_b32 s5, {WS_ZI}")
L = k.label()
k(f"{L}:")
k("buffer_load_dword v20, v2, s[20:23], s4 offen")
k("buffer_load_dword v21, v2, s[20:23], s5 offen")
k("s_waitcnt vmcnt(0)")
k("v_mul_f32 v22, v14, v20\nv_fma_f32 v22, -v15, v21, v22")
k("v_mul_f32 v23, v14, v21\nv_fmac_f32 v23, v15, v20")
k("v_fma_f32 v24, v10, v16, v22\nv_fma_f32 v24, -v11, v17, v24")
k("v_fma_f32 v25, v10, v17, v23\nv_fma_f32 v25, v11, v16, v25")
k("v_mov_b32 v16, v24\nv_mov_b32 v17, v25")
k("buffer_store_dword v24, v2, s[20:23], s4 offen")
k("buffer_store_dword v25, v2, s[20:23], s5 offen")
k("s_add_u32 s4, s4, 2560\ns_add_u32 s5, s5, 2560")
k(f"s_cmp_lt_u32 s4, {WS_ZI}")
k(f"s_cbranch_scc1 {L}")
k(f"{k.name}_end:\ns_endpgm")

k3 = Kern("n3_kernel", 5120, 256, vgpr=48)
k = k3
guard(k, 5120)
its = [k.srd(8, "BAre"), k.srd(12, "BAim"), k.srd(16, "BBre"), k.srd(20, "BBim"), k.srd(24, "BCre"), k.srd(28, "BCim"), k.srd(32, "Bldt"), k.srd(36, "ws")]
k.srd_fin(its)
k("s_lshl_b32 s3, s2, 8")
k("v_add_u32 v1, s3, v0")
k("v_lshrrev_b32 v2, 11, v1")
k("v_and_b32 v3, 2047, v1")
k("v_cvt_f32_u32 v3, v3")
rnd_bf16(k, 3)
k("v_lshlrev_b32 v4, 1, v2")
ld_bf16(k, 5, 4, 32)
k("s_waitcnt vmcnt(0)")
lo(k, 5, 5)
k(f"v_mul_f32 v5, {hex(LOG2E)}, v5\nv_exp_f32 v5, v5\ns_nop 0")
rnd_bf16(k, 5)
k("v_lshlrev_b32 v4, 8, v2")
k("v_mov_b32 v30, 0")
k("s_mov_b32 s4, 0")
L = k.label()
k(f"{L}:")
for i, sr in enumerate([8, 12, 16, 20, 24, 28]):
    k(f"buffer_load_ushort v{10+i}, v4, s[{sr}:{sr+3}], s4 offen")
k("s_waitcnt vmcnt(0)")
for i in range(6):
    lo(k, 10+i, 10+i)
k("v_mul_f32 v10, v5, v10\nv_mul_f32 v11, v5, v11")
k("v_mul_f32 v12, v5, v12\nv_mul_f32 v13, v5, v13")
k("v_mul_f32 v10, v10, v3\nv_mul_f32 v11, v11, v3")
cexp(k, 16, 17, 10, 11, 18, 19)
k("v_mul_f32 v20, v14, v12\nv_fma_f32 v20, -v15, v13, v20")
k("v_mul_f32 v21, v14, v13\nv_fmac_f32 v21, v15, v12")
k("v_fmac_f32 v30, v20, v16\nv_fma_f32 v30, -v21, v17, v30")
k("s_add_u32 s4, s4, 2\ns_cmp_lt_u32 s4, 256")
k(f"s_cbranch_scc1 {L}")
k("v_lshlrev_b32 v1, 2, v1")
k(f"s_mov_b32 s4, {WS_K}")
k("buffer_store_dword v30, v1, s[36:39], s4 offen")
k(f"{k.name}_end:\ns_endpgm")

EPS = float(sys.argv[2]) if len(sys.argv) > 2 else 0.0
k4 = Kern("n4_kernel", 5120, 256, vgpr=48)
k = k4
guard(k, 5120)
its = [k.srd(8, "x"), k.srd(12, "ACre"), k.srd(16, "ACim"), k.srd(20, "ws"), k.srd(24, "gw"), k.srd(28, "ADsk"), k.srd(32, "BDsk"), k.srd(36, "out")]
k.srd_fin(its)
tid_split(k)
k("v_mul_u32_u24 v4, 1280, v2")
k("v_mov_b32 v5, 0")
k("v_mov_b32 v10, 0")
k("s_mov_b32 s4, 0")
L = k.label()
k(f"{L}:")
k("buffer_load_dword v6, v4, s[8:11], s4 offen")
k("buffer_load_dword v7, v5, s[24:27], s4 offen")
k("s_waitcnt vmcnt(0)")
lo(k, 12, 6); lo(k, 13, 7)
k("v_mul_f32 v12, v12, v13"); rnd_bf16(k, 12); k("v_add_f32 v10, v10, v12")
hi(k, 12, 6); hi(k, 13, 7)
k("v_mul_f32 v12, v12, v13"); rnd_bf16(k, 12); k("v_add_f32 v10, v10, v12")
k("s_add_u32 s4, s4, 4\ns_cmp_lt_u32 s4, 1280")
k(f"s_cbranch_scc1 {L}")
rnd_bf16(k, 10)
k(f"v_mul_f32 v10, {hex(f2u(-1.4426950408889634))}, v10\nv_exp_f32 v10, v10\ns_nop 0\nv_add_f32 v10, 1.0, v10\nv_rcp_f32 v10, v10\ns_nop 0")
rnd_bf16(k, 10)
k("v_mul_u32_u24 v4, 2560, v2")
k("v_mul_u32_u24 v5, 1280, v3")
k("v_mov_b32 v11, 0")
k("s_mov_b32 s4, 0\ns_mov_b32 s5, 0")
k(f"s_mov_b32 s6, {WS_ZI}")
L = k.label()
k(f"{L}:")
k("buffer_load_dword v12, v4, s[20:23], s4 offen")
k("buffer_load_dword v13, v4, s[20:23], s6 offen")
k("buffer_load_ushort v14, v5, s[12:15], s5 offen")
k("buffer_load_ushort v15, v5, s[16:19], s5 offen")
k("s_waitcnt vmcnt(0)")
lo(k, 14, 14); lo(k, 15, 15)
k("v_fmac_f32 v11, v12, v14\nv_fma_f32 v11, -v13, v15, v11")
k("s_add_u32 s4, s4, 4\ns_add_u32 s6, s6, 4\ns_add_u32 s5, s5, 2\ns_cmp_lt_u32 s5, 1280")
k(f"s_cbranch_scc1 {L}")
k("v_add_f32 v11, v11, v11")
k("v_lshlrev_b32 v4, 1, v1\nv_lshlrev_b32 v5, 1, v3")
ld_bf16(k, 12, 4, 8); ld_bf16(k, 13, 5, 28); ld_bf16(k, 14, 5, 32)
k("s_waitcnt vmcnt(0)")
lo(k, 12, 12); lo(k, 13, 13); lo(k, 14, 14)
k("v_mul_f32 v13, v12, v13"); rnd_bf16(k, 13); k("v_add_f32 v11, v11, v13")
k("v_mul_f32 v14, v12, v14"); rnd_bf16(k, 14)
k("v_lshlrev_b32 v5, 13, v3")
k(f"v_add_u32 v5, {WS_K}, v5")
k("v_mov_b32 v15, 0")
k("v_mov_b32 v16, 0")
L = k.label();
k(f"{L}:")
k("v_cmp_le_u32 vcc, v16, v2")
k("s_and_saveexec_b64 s[40:41], vcc")
E = k.label()
k(f"s_cbranch_execz {E}")
k("buffer_load_dword v17, v5, s[20:23], 0 offen")
k("buffer_load_ushort v18, v4, s[8:11], 0 offen")
k("s_waitcnt vmcnt(0)")
lo(k, 18, 18)
k("v_fmac_f32 v15, v17, v18")
k("v_add_u32 v5, 4, v5\nv_subrev_u32 v4, 1280, v4\nv_add_u32 v16, 1, v16")
k(f"s_branch {L}")
k(f"{E}:")
k("s_mov_b64 exec, -1")
rnd_bf16(k, 15)
k("v_add_f32 v15, v15, v14"); rnd_bf16(k, 15)
k("v_sub_f32 v16, 1.0, v10"); rnd_bf16(k, 16)
k("v_mul_f32 v16, v16, v15"); rnd_bf16(k, 16)
k("v_fmac_f32 v16, v10, v11")
if EPS:
    k(f"v_mul_f32 v16, {hex(f2u(1.0+EPS))}, v16")
k("v_lshlrev_b32 v1, 2, v1")
k("buffer_store_dword v16, v1, s[36:39], 0 offen")
k(f"{k.name}_end:\ns_endpgm")

build([k1, k2, k3, k4], [k1, k2, k3, k4], sys.argv[1])
```

```python
from asmlib import *
WS_H = 0
WS_CP = 0x500000
WS_YB = 0x700000
WS_G = 0xA00000
WS_AGG = 0xA10000
WS_SIZE = 0xB00000
LOG2E = f2u(1.4426950408889634)
NLOG2E = f2u(-1.4426950408889634)
INV2PI = f2u(0.15915494309189535)
MASKHI = "0xffff0000"

class Regs:
    def __init__(self, start=0, limit=256):
        self.n = start; self.limit = limit; self.hi = start
    def get(self, cnt=1, align=1):
        if cnt >= 2 and align == 1:
            align = 2
        r = (self.n + align - 1) // align * align
        self.n = r + cnt
        assert self.n <= self.limit, f"out of regs {self.n}"
        self.hi = max(self.hi, self.n)
        return r
    def mark(self): return self.n
    def release(self, m): self.n = m

def wave_id(k, sdst, vtmp):
    k(f"v_lshrrev_b32 v{vtmp}, 6, v0")
    k("s_nop 0")
    k(f"v_readfirstlane_b32 s{sdst}, v{vtmp}")
    k("s_nop 1")

def lo16(k, d, src): k(f"v_lshlrev_b32 v{d}, 16, v{src}")
def hi16(k, d, src): k(f"v_and_b32 v{d}, {MASKHI}, v{src}")

WS_XR = 0xB00000
WS_SIZE2 = 0xE00000
WS_ST = 0xD80000
DBG_FLAG = 128

def mk_srd(k, dst, src, size):
    if dst != src:
        k(f"s_mov_b32 s{dst}, s{src}\ns_mov_b32 s{dst+1}, s{src+1}")
    k(f"s_mov_b32 s{dst+2}, {size}\ns_mov_b32 s{dst+3}, 0x20000")

class Stamper:
    def __init__(self, k, on, base=80):
        self.k = k; self.on = on; self.base = base; self.n = 0
    def __call__(self, i):
        if self.on:
            self.k(f"s_memtime s[{self.base+2*i}:{self.base+2*i+1}]\ns_waitcnt lgkmcnt(0)")
            self.n = max(self.n, i)
    def start(self):
        if self.on: self.k(f"s_memtime s[{self.base}:{self.base+1}]")
    def dump(self, ws_srd, end_label, wave_sreg, off=0):
        if not self.on: return
        k = self.k
        k("s_waitcnt vmcnt(0)")
        self(self.n + 1)
        k(f"s_cmp_lg_u32 s{wave_sreg}, 0\ns_cbranch_scc1 {end_label}")
        k("v_cmp_eq_u32 vcc, 0, v1\ns_and_saveexec_b64 s[70:71], vcc")
        k(f"s_cbranch_execz {end_label}")
        k(f"s_lshl_b32 s72, s2, 6\ns_add_u32 s72, s72, {WS_ST + off}\nv_mov_b32 v3, s72")
        for i in range(1, self.n + 1):
            k(f"s_sub_u32 s73, s{self.base+2*i}, s{self.base}\nv_mov_b32 v2, s73\nbuffer_store_dword v2, v3, s[{ws_srd}:{ws_srd+3}], 0 offen offset:{4*i}")
        k(f"s_getreg_b32 s73, hwreg(HW_REG_XCC_ID)\nv_mov_b32 v2, s73\nbuffer_store_dword v2, v3, s[{ws_srd}:{ws_srd+3}], 0 offen offset:56")
        k(f"s_getreg_b32 s73, hwreg(HW_REG_HW_ID)\nv_mov_b32 v2, s73\nbuffer_store_dword v2, v3, s[{ws_srd}:{ws_srd+3}], 0 offen offset:52")
        k(f"s_memrealtime s[74:75]\ns_waitcnt lgkmcnt(0)\nv_mov_b32 v2, s74\nbuffer_store_dword v2, v3, s[{ws_srd}:{ws_srd+3}], 0 offen offset:60")

class LdsTrack:
    def __init__(self, k):
        self.k = k; self.ops = []; self.done = 0
    def issue(self, txt, tag):
        self.k(txt); self.ops.append(tag)
    def need(self, *tags):
        last = -1
        for i in range(len(self.ops) - 1, -1, -1):
            if self.ops[i] in tags and i > last:
                last = i; break
        idx = max((i for i, t in enumerate(self.ops) if t in tags), default=-1)
        idxs = []
        for t in tags:
            c = [i for i, x in enumerate(self.ops) if x == t]
            if c: idxs.append(c[-1])
        if not idxs: return
        idx = max(idxs)
        if idx < self.done: return
        n = len(self.ops) - 1 - idx
        n = min(n, 15)
        self.k(f"s_waitcnt lgkmcnt({n})")
        self.done = len(self.ops) - n
    def all_done(self):
        self.k("s_waitcnt lgkmcnt(0)"); self.done = len(self.ops)

WS_FL = 0xA40000
```

```python
from common import *

NST = 7
STG = 18432
XT = NST * STG
YT = XT + 10240
LDS2 = YT + 10240
OST = 0
NSL = 20

def gen_k2(dbg_time=False):
    k = Kern("k2_kernel", 256, 512, lds=LDS2, vgpr=160, sgpr=96)
    def stamp(i):
        if dbg_time:
            k(f"s_memtime s[{64+2*i}:{65+2*i}]\ns_waitcnt lgkmcnt(0)")
    END = k.name + "_end"
    k(f"s_cmp_ge_u32 s2, 256\ns_cbranch_scc1 {END}")
    its = [k.srd(8, "x"), k.srd(12, "out"), k.srd(16, "ws", size=WS_SIZE), k.srd(20, "ADsk"), k.srd(24, "BDsk")]
    if dbg_time:
        its.append(k.srd(60, "dbg"))
        k("s_memtime s[64:65]")
    wave_id(k, 28, 1)
    k("v_and_b32 v1, 63, v0")
    k("s_and_b32 s30, s2, 7\ns_lshr_b32 s31, s2, 3")
    k("s_lshr_b32 s32, s30, 1\ns_lshl_b32 s32, s32, 3\ns_lshr_b32 s33, s31, 2\ns_add_u32 s32, s32, s33")
    k("s_and_b32 s33, s30, 1\ns_lshl_b32 s33, s33, 2\ns_and_b32 s34, s31, 3\ns_add_u32 s33, s33, s34")
    k("s_lshl_b32 s32, s32, 6")
    k("s_mul_i32 s33, s33, 80")
    k.srd_fin(its)
    PROD = k.label("prod")
    k(f"s_cmp_ge_u32 s28, 4\ns_cbranch_scc1 {PROD}")

    R = Regs(2, 160)
    acc = R.get(20, 4)
    E1 = R.get(20, 4); E2 = R.get(20, 4)
    fX = R.get(24, 4); fY = R.get(24, 4)
    aA = R.get(); aB = R.get(); aA1 = R.get(); aB1 = R.get()
    vg = R.get(); vomg = R.get(); vc = R.get(); vh = R.get()
    t = [R.get() for _ in range(12)]
    dA = R.get(10, 2); dB = R.get(10, 2)
    k(f"v_and_b32 v{vc}, 15, v1\nv_lshrrev_b32 v{vh}, 4, v1")
    k(f"s_mul_i32 s35, s32, 1280\ns_lshl_b32 s36, s33, 1\ns_add_u32 s35, s35, s36")
    k(f"s_lshl_b32 s36, s28, 6")
    for z in range(3):
        skip = None
        if z == 2:
            skip = k.label("sk")
            k(f"s_cmp_ge_u32 s28, 2\ns_cbranch_scc1 {skip}")
        k(f"v_add_u32 v{t[0]}, s36, v1")
        if z: k(f"v_add_u32 v{t[0]}, {256*z}, v{t[0]}")
        k(f"v_mul_u32_u24 v{t[1]}, 6554, v{t[0]}\nv_lshrrev_b32 v{t[1]}, 16, v{t[1]}")
        k(f"v_mul_u32_u24 v{t[2]}, 10, v{t[1]}\nv_sub_u32 v{t[2]}, v{t[0]}, v{t[2]}")
        k(f"v_mul_u32_u24 v{t[1]}, 1280, v{t[1]}\nv_lshl_add_u32 v{t[1]}, v{t[2]}, 4, v{t[1]}")
        k(f"s_lshl_b32 s37, s28, 10\ns_add_u32 m0, s37, {XT + 4096*z}")
        k("s_nop 0")
        k(f"buffer_load_dwordx4 v{t[1]}, s[8:11], s35 offen lds")
        k(f"v_lshrrev_b32 v{t[3]}, 3, v1\nv_lshlrev_b32 v{t[3]}, 12, v{t[3]}\nv_and_b32 v{t[4]}, 7, v1\nv_lshl_add_u32 v{t[3]}, v{t[4]}, 4, v{t[3]}")
        k(f"s_lshl_b32 s38, s28, 3\ns_add_u32 s38, s38, s33\ns_add_u32 s38, s38, {32*z}\ns_lshl_b32 s38, s38, 12")
        k(f"s_lshl_b32 s39, s32, 1\ns_add_u32 s38, s38, s39\ns_add_u32 s38, s38, {WS_YB}")
        k(f"s_add_u32 m0, s37, {YT + 4096*z}")
        k("s_nop 0")
        k(f"buffer_load_dwordx4 v{t[3]}, s[16:19], s38 offen lds")
        if skip: k(f"{skip}:")
    k(f"s_lshl_b32 s36, s28, 4\ns_add_u32 s36, s36, s32")
    k(f"v_add_u32 v{t[0]}, s36, v{vc}\nv_lshlrev_b32 v{t[0]}, 2, v{t[0]}")
    k(f"s_mov_b32 s37, {WS_G}")
    k(f"buffer_load_dword v{vg}, v{t[0]}, s[16:19], s37 offen")
    k(f"v_lshlrev_b32 v{t[0]}, 3, v{vh}\ns_lshl_b32 s37, s33, 1")
    for j in range(5):
        k(f"buffer_load_dwordx2 v[{dA+2*j}:{dA+2*j+1}], v{t[0]}, s[20:23], s37 offen offset:{32*j}")
        k(f"buffer_load_dwordx2 v[{dB+2*j}:{dB+2*j+1}], v{t[0]}, s[24:27], s37 offen offset:{32*j}")
    k(f"v_lshrrev_b32 v{t[0]}, 1, v{vc}\nv_xor_b32 v{t[0]}, v{t[0]}, v{vh}\nv_lshlrev_b32 v{t[0]}, 4, v{t[0]}")
    k(f"v_lshl_add_u32 v{aA}, v{vc}, 7, v{t[0]}")
    k(f"s_lshl_b32 s37, s28, 11")
    k(f"v_add_u32 v{aB}, s37, v{aA}")
    k(f"v_add_u32 v{aA}, 8192, v{aA}")
    k(f"v_xor_b32 v{aA1}, 64, v{aA}\nv_xor_b32 v{aB1}, 64, v{aB}")
    for i in range(20):
        k(f"v_mov_b32 v{acc+i}, 0")
    stamp(1)
    k("s_waitcnt vmcnt(0)")
    stamp(2)
    k("s_barrier")
    stamp(3)
    k(f"v_sub_f32 v{vomg}, 1.0, v{vg}\nv_cvt_pk_bf16_f32 v{vomg}, v{vomg}, v{vomg}\nv_lshlrev_b32 v{vomg}, 16, v{vomg}")
    xa = t[10]; ya = t[11]
    k(f"s_lshl_b32 s37, s28, 4")
    k(f"v_add_u32 v{t[0]}, s37, v{vc}")
    k(f"v_mul_u32_u24 v{xa}, 160, v{t[0]}\nv_lshl_add_u32 v{xa}, v{vh}, 3, v{xa}\nv_add_u32 v{xa}, {XT}, v{xa}")
    k(f"v_lshlrev_b32 v{ya}, 1, v{t[0]}\nv_lshl_add_u32 v{ya}, v{vh}, 9, v{ya}\nv_add_u32 v{ya}, {YT}, v{ya}")
    for j in range(5):
        k(f"ds_read_b64 v[{fX+2*j}:{fX+2*j+1}], v{xa} offset:{32*j}")
        for r in range(4):
            k(f"ds_read_u16 v{fY+4*j+r}, v{ya} offset:{(16*j+r)*128}")
        if j == 2:
            k("s_waitcnt lgkmcnt(0)")
    k("s_waitcnt lgkmcnt(0)")
    x0, x1, a0, a1, b0, b1, p0, p1 = t[0], t[1], t[2], t[3], t[4], t[5], t[6], t[7]
    for j in range(5):
        for hp in range(2):
            xs = fX + 2*j + hp; das = dA + 2*j + hp; dbs = dB + 2*j + hp
            r0 = 2*hp
            lo16(k, x0, xs); hi16(k, x1, xs)
            lo16(k, a0, das); hi16(k, a1, das)
            lo16(k, b0, dbs); hi16(k, b1, dbs)
            k(f"v_mul_f32 v{a0}, v{x0}, v{a0}\nv_mul_f32 v{a1}, v{x1}, v{a1}")
            k(f"v_mul_f32 v{b0}, v{x0}, v{b0}\nv_mul_f32 v{b1}, v{x1}, v{b1}")
            k(f"v_cvt_pk_bf16_f32 v{p0}, v{a0}, v{a1}\nv_cvt_pk_bf16_f32 v{p1}, v{b0}, v{b1}")
            lo16(k, E1+4*j+r0, p0); hi16(k, E1+4*j+r0+1, p0)
            lo16(k, b0, p1); hi16(k, b1, p1)
            y0 = fY + 4*j + r0; y1 = y0 + 1
            lo16(k, y0, y0); lo16(k, y1, y1)
            k(f"v_add_f32 v{b0}, v{b0}, v{y0}\nv_add_f32 v{b1}, v{b1}, v{y1}")
            k(f"v_cvt_pk_bf16_f32 v{p1}, v{b0}, v{b1}")
            lo16(k, b0, p1); hi16(k, b1, p1)
            k(f"v_mul_f32 v{b0}, v{b0}, v{vomg}\nv_mul_f32 v{b1}, v{b1}, v{vomg}")
            k(f"v_cvt_pk_bf16_f32 v{p1}, v{b0}, v{b1}")
            lo16(k, E2+4*j+r0, p1); hi16(k, E2+4*j+r0+1, p1)
    stamp(4)
    def reads(buf, aa, ab):
        k(f"ds_read_b128 v[{buf}:{buf+3}], v{ab}")
        for j in range(5):
            k(f"ds_read_b128 v[{buf+4+4*j}:{buf+7+4*j}], v{aa} offset:{2048*j}")
    def mfmas(buf):
        for j in range(5):
            k(f"v_mfma_f32_16x16x32_bf16 v[{acc+4*j}:{acc+4*j+3}], v[{buf+4+4*j}:{buf+7+4*j}], v[{buf}:{buf+3}], v[{acc+4*j}:{acc+4*j+3}]")
    for s_ in range(NSL):
        if s_ > 0:
            k("s_barrier")
        reads(fX, aA, aB)
        if s_ > 0:
            mfmas(fY)
        reads(fY, aA1, aB1)
        k("s_waitcnt lgkmcnt(6)")
        mfmas(fX)
        if s_ + 1 < NSL:
            delta = STG if (s_ + 1) % NST else -(NST - 1) * STG
            for r in (aA, aB, aA1, aB1):
                k(f"v_add_u32 v{r}, {delta & 0xffffffff:#x}, v{r}")
        k("s_waitcnt lgkmcnt(0)")
    mfmas(fY)
    stamp(5)
    k("s_barrier")
    k("s_nop 7\ns_nop 1")
    for i in range(20):
        k(f"v_add_f32 v{acc+i}, v{acc+i}, v{E1+i}")
    for i in range(20):
        k(f"v_fma_f32 v{acc+i}, v{vg}, v{acc+i}, v{E2+i}")
    k(f"s_lshl_b32 s37, s28, 4")
    k(f"v_add_u32 v{t[0]}, s37, v{vc}\nv_mul_u32_u24 v{t[0]}, 336, v{t[0]}\nv_lshl_add_u32 v{t[0]}, v{vh}, 4, v{t[0]}")
    for j in range(5):
        k(f"ds_write_b128 v{t[0]}, v[{acc+4*j}:{acc+4*j+3}] offset:{OST + 64*j}")
    k("s_waitcnt lgkmcnt(0)")
    k("s_barrier")
    stamp(6)
    FIN = k.label("fin")
    k(f"s_branch {FIN}")

    k(f"{PROD}:")
    k("s_sub_u32 s29, s28, 4")
    k("v_lshrrev_b32 v2, 4, v1\ns_and_b32 s36, s29, 1\ns_lshl_b32 s36, s36, 2\nv_add_u32 v2, s36, v2\nv_and_b32 v2, 7, v2")
    k("v_and_b32 v3, 7, v1\nv_xor_b32 v2, v2, v3\nv_lshlrev_b32 v2, 4, v2")
    k("v_lshrrev_b32 v3, 3, v1\nv_mul_u32_u24 v3, 2560, v3\nv_add_u32 v2, v2, v3")
    k("s_lshl_b32 s36, s29, 3")
    k("s_add_u32 s40, s32, s36\ns_mul_i32 s40, s40, 2560")
    k(f"s_add_u32 s41, s40, {32*2560}")
    k(f"s_add_u32 s42, s33, s36\ns_mul_i32 s42, s42, 2560\ns_add_u32 s42, s42, {WS_CP}")
    k(f"s_add_u32 s43, s42, {32*2560}\ns_add_u32 s44, s42, {64*2560}")
    k("s_lshl_b32 s45, s29, 10")
    P4 = k.label("p4")
    k(f"s_cmp_ge_u32 s29, 2\ns_cbranch_scc1 {P4}")
    PEND = k.label("pend")
    for n in (5, 4):
        if n == 4: k(f"{P4}:")
        srcs = [(40, 0), (41, 4096), (42, 8192), (43, 12288), (44, 16384)][:n]
        def issue(sl):
            base = (sl % NST) * STG
            for sreg, lo in srcs:
                k(f"s_add_u32 m0, s45, {base + lo}")
                k(f"s_add_u32 s46, s{sreg}, {128*sl}")
                k(f"buffer_load_dwordx4 v2, s[16:19], s46 offen lds")
        for sl in range(NST - 1):
            issue(sl)
        for s_ in range(NSL):
            later = min(NSL - 1, s_ + NST - 2) - s_
            k(f"s_waitcnt vmcnt({later * n})")
            k("s_barrier")
            nx = s_ + NST - 1
            if nx < NSL:
                issue(nx)
        k("s_barrier")
        k("s_barrier")
        if n == 5: k(f"s_branch {PEND}")
    k(f"{PEND}:")
    k(f"{FIN}:")
    k("s_mul_i32 s36, s32, 2560\ns_lshl_b32 s37, s33, 2\ns_add_u32 s36, s36, s37")
    for n in range(3):
        lab = None
        if n == 2:
            lab = k.label("f")
            k(f"s_cmp_ge_u32 s28, 4\ns_cbranch_scc1 {lab}")
        k(f"v_add_u32 v2, {512*n}, v0")
        k("v_mul_u32_u24 v3, 3277, v2\nv_lshrrev_b32 v3, 16, v3")
        k("v_mul_u32_u24 v4, 20, v3\nv_sub_u32 v4, v2, v4")
        k(f"v_mul_u32_u24 v5, 336, v3\nv_lshl_add_u32 v5, v4, 4, v5")
        k(f"ds_read_b128 v[8:11], v5 offset:{OST}")
        k("v_mul_u32_u24 v6, 2560, v3\nv_lshl_add_u32 v6, v4, 4, v6")
        k("s_waitcnt lgkmcnt(0)")
        k("buffer_store_dwordx4 v[8:11], v6, s[12:15], s36 offen")
        k("s_nop 1")
        if lab: k(f"{lab}:")
    if dbg_time:
        k("s_waitcnt vmcnt(0)")
        stamp(7)
        k("s_mov_b32 s62, 256\ns_mov_b32 s63, 0x20000")
        k(f"s_cmp_ge_u32 s2, 8\ns_cbranch_scc1 {END}")
        k(f"s_cmp_lg_u32 s28, 0\ns_cbranch_scc1 {END}")
        k("v_cmp_eq_u32 vcc, 0, v1\ns_and_saveexec_b64 s[50:51], vcc")
        k(f"s_cbranch_execz {END}")
        k("s_lshl_b32 s59, s2, 5\nv_mov_b32 v3, s59")
        for i in range(1, 8):
            k(f"s_sub_u32 s58, s{64+2*i}, s64\nv_mov_b32 v2, s58\nbuffer_store_dword v2, v3, s[60:63], 0 offen offset:{4*i}")
    k(f"{END}:\ns_endpgm")
    return k

if __name__ == "__main__":
    import sys
    k2 = gen_k2(dbg_time=True)
    build([k2], [k2], sys.argv[1])
```

```python
from common import *
WS_XR = 0xB00000
WS_SIZE2 = 0xE00000
UN = 16384
DBG_FLAG = 128

def direct_pow(k, dst, e_src, aL, th, u0, u1, e_is_vgpr=False):
    if e_src is None:
        k(f"v_exp_f32 v{u0}, v{aL}\nv_fract_f32 v{u1}, v{th}")
    else:
        e = f"v{e_src}" if e_is_vgpr else f"{f2u(float(e_src)):#x}"
        k(f"v_mul_f32 v{u0}, {e}, v{aL}\nv_mul_f32 v{u1}, {e}, v{th}")
        k(f"v_exp_f32 v{u0}, v{u0}\nv_fract_f32 v{u1}, v{u1}")
    k(f"v_cos_f32 v{dst}, v{u1}\nv_sin_f32 v{dst+1}, v{u1}\ns_nop 0")
    k(f"v_mul_f32 v{dst}, v{dst}, v{u0}\nv_mul_f32 v{dst+1}, v{dst+1}, v{u0}")

def cfma(k, dr, di, ar, ai, br, bi, cr, ci):
    k(f"v_fma_f32 v{dr}, v{ar}, v{br}, v{cr}\nv_fma_f32 v{di}, v{ar}, v{bi}, v{ci}")
    k(f"v_fma_f32 v{dr}, -v{ai}, v{bi}, v{dr}\nv_fma_f32 v{di}, v{ai}, v{br}, v{di}")

def gen_A(k, stamp=lambda i: None, store_flags=""):
    its = [k.srd(8, "x"), k.srd(12, "ABre"), k.srd(16, "ABim"), k.srd(20, "ws", size=WS_SIZE2), k.srd(24, "dbg"),
           k.srd(28, "Lre"), k.srd(32, "Lim"), k.srd(36, "Aldt"), k.srd(40, "ACre"), k.srd(44, "ACim"), k.srd(48, "gw")]
    k("s_and_b32 s54, s2, 7\ns_lshr_b32 s55, s2, 3\ns_mul_i32 s56, s55, 52\ns_lshr_b32 s56, s56, 8")
    k("s_mul_i32 s57, s56, 5\ns_sub_u32 s57, s55, s57")
    k("s_lshr_b32 s52, s54, 1\ns_lshl_b32 s52, s52, 2\ns_add_u32 s52, s52, s56")
    k("s_and_b32 s53, s54, 1\ns_mul_i32 s53, s53, 5\ns_add_u32 s53, s53, s57")
    R = Regs(2, 256)
    vc = R.get(); vh = R.get()
    accR = R.get(32, 4); accI = R.get(32, 4)
    vX0 = R.get(); vX1 = R.get(); vB0 = R.get(); vB1 = R.get()
    aA = R.get(); aA1 = R.get(); aAh = R.get(); aA1h = R.get(); aB = R.get(); aB1 = R.get(); aBh = R.get(); aB1h = R.get()
    t = [R.get() for _ in range(8)]
    L1 = R.get(2, 2); L16 = R.get(2, 2); L32 = R.get(2, 2); Lh = R.get(2, 2); LW = R.get(8, 2)
    aL = R.get(); th = R.get(); vtag = R.get(2, 2); prm = R.get(3)
    AX = R.get(32, 4); AY = R.get(32, 4); BX = R.get(8, 4); BY = R.get(8, 4)
    k(f"v_and_b32 v{vc}, 15, v1\nv_lshrrev_b32 v{vh}, 4, v1")
    k(f"v_lshrrev_b32 v{t[0]}, 3, v1\nv_mul_u32_u24 v{t[0]}, 1280, v{t[0]}\nv_and_b32 v{t[1]}, 7, v1")
    k(f"s_lshl_b32 s54, s4, 1")
    k(f"v_xor_b32 v{t[2]}, s54, v{t[1]}\nv_lshl_add_u32 v{vX0}, v{t[2]}, 4, v{t[0]}")
    k(f"s_add_u32 s54, s54, 1\nv_xor_b32 v{t[2]}, s54, v{t[1]}\nv_lshl_add_u32 v{vX1}, v{t[2]}, 4, v{t[0]}")
    k(f"v_xor_b32 v{t[2]}, v{vh}, v{t[1]}\nv_lshl_add_u32 v{vB0}, v{t[2]}, 4, v{t[0]}")
    k(f"v_xor_b32 v{t[2]}, 4, v{t[2]}\nv_lshl_add_u32 v{vB1}, v{t[2]}, 4, v{t[0]}")
    k("s_lshl_b32 s58, s52, 7\ns_lshl_b32 s54, s4, 5\ns_add_u32 s58, s58, s54\ns_mul_i32 s58, s58, 1280")
    k("s_lshl_b32 s59, s53, 2\ns_add_u32 s59, s59, s4\ns_lshl_b32 s60, s59, 4\ns_mul_i32 s59, s60, 1280")
    k("s_lshl_b32 s61, s4, 12")
    k("s_lshl_b32 s62, s53, 7")
    k.srd_fin(its)
    def issue(n):
        slot = (n % 5) * UN
        isx = (n % 2 == 0)
        for z in range(4):
            k(f"s_add_u32 m0, s61, {slot + 1024*z}")
            if isx:
                k(f"s_add_u32 s63, s58, s62" if z == 0 else f"s_add_u32 s63, s63, {8*1280}")
                k(f"buffer_load_dwordx4 v{vX0 if z < 2 else vX1}, s[8:11], s63 offen lds")
            else:
                if z == 0: k("s_add_u32 s63, s59, s62")
                elif z == 2: k(f"s_sub_u32 s63, s63, {8*1280}")
                else: k(f"s_add_u32 s63, s63, {8*1280}")
                srd = 12 if z < 2 else 16
                k(f"buffer_load_dwordx4 v{vB0 if z % 2 == 0 else vB1}, s[{srd}:{srd+3}], s63 offen lds")
        if not isx:
            k("s_add_u32 s62, s62, 128\ns_cmp_eq_u32 s62, 1280\ns_cselect_b32 s62, 0, s62")
    NN = k.label("nn")
    k(f"s_cmp_lg_u32 s4, 0\ns_cbranch_scc1 {NN}")
    k("s_memrealtime s[64:65]\ns_waitcnt lgkmcnt(0)\ns_or_b32 s64, s64, 1")
    k(f"v_mov_b32 v{vtag}, s64\nv_mov_b32 v{vtag+1}, 0\ns_lshl_b32 s65, s53, 2\nv_mov_b32 v{t[0]}, s65")
    k("s_mov_b64 s[66:67], exec\ns_mov_b64 exec, 1")
    k(f"buffer_atomic_cmpswap v[{vtag}:{vtag+1}], v{t[0]}, s[24:27], 0 offen sc0 sc1")
    k("s_mov_b64 exec, s[66:67]")
    k(f"{NN}:")
    for n in range(4): issue(n)
    k(f"v_add_u32 v{t[0]}, s60, v{vc}\nv_lshlrev_b32 v{t[0]}, 1, v{t[0]}")
    k(f"buffer_load_ushort v{prm}, v{t[0]}, s[28:31], 0 offen\nbuffer_load_ushort v{prm+1}, v{t[0]}, s[32:35], 0 offen\nbuffer_load_ushort v{prm+2}, v{t[0]}, s[36:39], 0 offen")
    stamp(1)
    k(f"v_lshrrev_b32 v{t[0]}, 2, v{vc}\nv_and_b32 v{t[1]}, 1, v{vc}\nv_lshl_add_u32 v{t[2]}, v{t[0]}, 1, v{t[1]}")
    k(f"v_lshlrev_b32 v{t[3]}, 4, v{t[2]}")
    k(f"v_lshrrev_b32 v{t[4]}, 1, v{vc}\nv_and_b32 v{t[4]}, 1, v{t[4]}\nv_add_u32 v{t[3]}, v{t[3]}, v{t[4]}")
    k(f"v_xor_b32 v{t[2]}, v{t[2]}, v{vh}\nv_lshlrev_b32 v{t[2]}, 4, v{t[2]}\nv_lshl_add_u32 v{aA}, v{t[3]}, 7, v{t[2]}")
    k(f"v_xor_b32 v{aA1}, 64, v{aA}\nv_add_u32 v{aAh}, 0x10000, v{aA}\nv_add_u32 v{aA1h}, 0x10000, v{aA1}")
    k(f"v_lshrrev_b32 v{t[2]}, 1, v{vc}\nv_xor_b32 v{t[2]}, v{t[2]}, v{vh}\nv_lshlrev_b32 v{t[2]}, 4, v{t[2]}\nv_lshl_add_u32 v{aB}, v{vc}, 7, v{t[2]}")
    k(f"v_add_u32 v{aB}, s61, v{aB}\nv_xor_b32 v{aB1}, 64, v{aB}\nv_add_u32 v{aBh}, 0x10000, v{aB}\nv_add_u32 v{aB1h}, 0x10000, v{aB1}")
    for i in range(32):
        k(f"v_mov_b32 v{accR+i}, 0\nv_mov_b32 v{accI+i}, 0")
    k("s_waitcnt vmcnt(15)")
    k("s_barrier")
    stamp(2)
    SC = 4 * UN
    TS = 256
    rd = AX
    for q in range(2):
        k(f"v_lshrrev_b32 v{t[0]}, 5, v1\ns_lshl_b32 s54, s4, 1\ns_add_u32 s54, s54, {8*q}\nv_add_u32 v{t[0]}, s54, v{t[0]}")
        k(f"v_and_b32 v{t[1]}, 31, v1\nv_lshrrev_b32 v{t[2]}, 2, v{t[1]}\nv_lshrrev_b32 v{t[3]}, 1, v{t[0]}\nv_xor_b32 v{t[2]}, v{t[2]}, v{t[3]}")
        k(f"v_lshlrev_b32 v{t[2]}, 4, v{t[2]}\nv_and_b32 v{t[3]}, 3, v{t[1]}\nv_lshl_add_u32 v{t[2]}, v{t[3]}, 2, v{t[2]}\nv_lshl_add_u32 v{t[2]}, v{t[0]}, 10, v{t[2]}")
        for e in range(8):
            k(f"ds_read_b32 v{rd+8*q+e}, v{t[2]} offset:{128*e}")
        k(f"v_sub_u32 v{t[0]}, 15, v{t[0]}\nv_and_b32 v{t[3]}, 15, v{t[1]}\nv_xor_b32 v{t[0]}, v{t[0]}, v{t[3]}\nv_lshlrev_b32 v{t[0]}, 4, v{t[0]}\nv_mul_u32_u24 v{t[4+q]}, {2*TS}, v{t[1]}\nv_add_u32 v{t[4+q]}, v{t[4+q]}, v{t[0]}")
        k(f"v_add_u32 v{t[4+q]}, {SC}, v{t[4+q]}")
    k("s_mov_b32 s54, 0x05040100\ns_mov_b32 s55, 0x07060302")
    k("s_waitcnt lgkmcnt(0)")
    for q in range(2):
        for half, sel in ((0, "s54"), (1, "s55")):
            o = AY + 8*q + 4*half
            for dw in range(4):
                k(f"v_perm_b32 v{o+dw}, v{rd+8*q+6-2*dw}, v{rd+8*q+7-2*dw}, {sel}")
            k(f"ds_write_b128 v{t[4+q]}, v[{o}:{o+3}] offset:{half*TS}")
    k("s_waitcnt lgkmcnt(0)")
    k("s_barrier")
    k(f"s_lshl_b32 s54, s4, 4\nv_add_u32 v{t[0]}, s54, v{vh}\nv_mul_u32_u24 v{t[1]}, {TS}, v{t[0]}\nv_add_u32 v{t[1]}, {SC}, v{t[1]}")
    for z in range(4):
        k(f"v_lshrrev_b32 v{t[2]}, 1, v{t[0]}\nv_add_u32 v{t[2]}, {2*z}, v{t[2]}\nv_and_b32 v{t[2]}, 15, v{t[2]}\nv_xor_b32 v{t[2]}, v{t[2]}, v{vc}\nv_lshl_add_u32 v{t[2]}, v{t[2]}, 4, v{t[1]}")
        k(f"ds_read_b128 v[{AX+4*z}:{AX+4*z+3}], v{t[2]} offset:{4*z*TS}")
    k(f"v_lshlrev_b32 v{t[0]}, 12, v{t[0]}\nv_lshl_add_u32 v{t[0]}, v{vc}, 4, v{t[0]}")
    k(f"s_lshl_b32 s54, s53, 18\ns_sub_u32 s55, 15, s52\ns_lshl_b32 s55, s55, 8\ns_add_u32 s54, s54, s55\ns_add_u32 s54, s54, {WS_XR}")
    k("s_waitcnt lgkmcnt(0)")
    for z in range(4):
        k(f"s_add_u32 s55, s54, {4*z*4096}")
        k(f"buffer_store_dwordx4 v[{AX+4*z}:{AX+4*z+3}], v{t[0]}, s[20:23], s55 offen sc1")
    k("s_waitcnt vmcnt(0)")
    k("s_barrier")
    FL = k.label("fl")
    k(f"s_cmp_lg_u32 s4, 0\ns_cbranch_scc1 {FL}")
    k(f"s_lshl_b32 s54, s53, 2\ns_add_u32 s54, s54, {DBG_FLAG}\nv_mov_b32 v{t[0]}, s54\nv_mov_b32 v{t[1]}, 1")
    k("s_mov_b64 s[66:67], exec\ns_mov_b64 exec, 1")
    k(f"buffer_atomic_add v{t[1]}, v{t[0]}, s[24:27], 0 offen sc1")
    k("s_mov_b64 exec, s[66:67]")
    k(f"v_readfirstlane_b32 s68, v{vtag+0}")
    k(f"s_cmp_eq_u32 s68, 0\ns_cselect_b32 s68, s64, s68")
    k(f"{FL}:")
    issue(4)
    stamp(3)
    k(f"v_lshlrev_b32 v{prm}, 16, v{prm}\nv_lshlrev_b32 v{prm+1}, 16, v{prm+1}\nv_lshlrev_b32 v{prm+2}, 16, v{prm+2}")
    k(f"v_mul_f32 v{prm+2}, {LOG2E:#x}, v{prm+2}\nv_exp_f32 v{prm+2}, v{prm+2}\ns_nop 0\nv_cvt_pk_bf16_f32 v{prm+2}, v{prm+2}, v{prm+2}\nv_lshlrev_b32 v{prm+2}, 16, v{prm+2}")
    k(f"v_mul_f32 v{aL}, v{prm+2}, v{prm}\nv_mul_f32 v{th}, v{prm+2}, v{prm+1}\nv_mul_f32 v{aL}, {LOG2E:#x}, v{aL}\nv_mul_f32 v{th}, {INV2PI:#x}, v{th}")
    direct_pow(k, L1, None, aL, th, t[0], t[1])
    direct_pow(k, L16, 16, aL, th, t[0], t[1])
    direct_pow(k, L32, 32, aL, th, t[0], t[1])
    k(f"v_cvt_f32_u32 v{t[2]}, v{vh}\nv_mul_f32 v{t[2]}, {f2u(32.0):#x}, v{t[2]}")
    direct_pow(k, Lh, t[2], aL, th, t[0], t[1], True)
    for z in range(4):
        k(f"s_sub_i32 s54, s52, {1 + 4*z}\nv_sub_u32 v{t[2]}, s54, v{vh}\nv_max_i32 v{t[2]}, 0, v{t[2]}\nv_cvt_f32_i32 v{t[2]}, v{t[2]}\nv_mul_f32 v{t[2]}, {f2u(128.0):#x}, v{t[2]}")
        direct_pow(k, LW + 2*z, t[2], aL, th, t[0], t[1], True)
    def reads(A, B, s_, ks):
        xs = (2*s_) % 5; bs = (2*s_+1) % 5
        ra = (aA1 if ks else aA) if xs < 4 else (aA1h if ks else aAh)
        rb = (aB1 if ks else aB) if bs < 4 else (aB1h if ks else aBh)
        xo = (xs % 4) * UN; bo = (bs % 4) * UN
        k(f"ds_read_b128 v[{B}:{B+3}], v{rb} offset:{bo}\nds_read_b128 v[{B+4}:{B+7}], v{rb} offset:{bo+2048}")
        for m in range(8):
            k(f"ds_read_b128 v[{A+4*m}:{A+4*m+3}], v{ra} offset:{xo + 256*m}")
    def mfmas(A, B):
        for m in range(8):
            k(f"v_mfma_f32_16x16x32_bf16 v[{accR+4*m}:{accR+4*m+3}], v[{A+4*m}:{A+4*m+3}], v[{B}:{B+3}], v[{accR+4*m}:{accR+4*m+3}]")
            k(f"v_mfma_f32_16x16x32_bf16 v[{accI+4*m}:{accI+4*m+3}], v[{A+4*m}:{A+4*m+3}], v[{B+4}:{B+7}], v[{accI+4*m}:{accI+4*m+3}]")
    for s_ in range(10):
        if s_ > 0:
            k(f"s_waitcnt vmcnt({0 if s_ == 9 else 4})")
            k("s_barrier")
        reads(AX, BX, s_, 0)
        if s_ >= 1:
            if 2*s_+3 <= 19: issue(2*s_+3)
            if 2*s_+4 <= 19: issue(2*s_+4)
            mfmas(AY, BY)
        if s_ == 9:
            TG = k.label("tg")
            k(f"s_cmp_lg_u32 s4, 0\ns_cbranch_scc1 {TG}\nv_mov_b32 v{t[0]}, s68\nv_mov_b32 v{t[1]}, 0\nds_write_b32 v{t[1]}, v{t[0]} offset:8192\n{TG}:")
        reads(AY, BY, s_, 1)
        k("s_waitcnt lgkmcnt(10)")
        mfmas(AX, BX)
        k("s_waitcnt lgkmcnt(0)")
    mfmas(AY, BY)
    k("s_barrier")
    stamp(4)
    k(f"v_mov_b32 v{t[1]}, 0\nds_read_b32 v{vtag}, v{t[1]} offset:8192")
    T = Regs(AX, 256)
    Sa = T.get(4, 2); Sb = T.get(4, 2)
    tt = T.get(4, 2)
    LAM = f"v[{L1}:{L1+1}]"
    def step(dst, src, zr, zi):
        k(f"v_pk_fma_f32 v[{tt}:{tt+1}], {LAM}, v[{src}:{src+1}], v[{zr}:{zr+1}] op_sel:[0,0,0] op_sel_hi:[0,1,1]")
        k(f"v_pk_fma_f32 v[{tt+2}:{tt+3}], {LAM}, v[{src+2}:{src+3}], v[{zi}:{zi+1}] op_sel:[0,0,0] op_sel_hi:[0,1,1]")
        k(f"v_pk_fma_f32 v[{dst}:{dst+1}], {LAM}, v[{src+2}:{src+3}], v[{tt}:{tt+1}] op_sel:[1,0,0] op_sel_hi:[1,1,1] neg_lo:[1,0,0] neg_hi:[1,0,0]")
        k(f"v_pk_fma_f32 v[{dst+2}:{dst+3}], {LAM}, v[{src}:{src+1}], v[{tt+2}:{tt+3}] op_sel:[1,0,0] op_sel_hi:[1,1,1]")
    k("s_nop 7")
    k(f"v_mov_b32 v{Sa}, v{accR}\nv_mov_b32 v{Sa+1}, v{accR+1}\nv_mov_b32 v{Sa+2}, v{accI}\nv_mov_b32 v{Sa+3}, v{accI+1}")
    cur, nxt = Sa, Sb
    for s_ in range(1, 16):
        m = s_ >> 1; pr = s_ & 1
        step(nxt, cur, accR + 4*m + 2*pr, accI + 4*m + 2*pr)
        cur, nxt = nxt, cur
    AG = T.get(4, 2)
    for i in range(4): k(f"v_mov_b32 v{AG+i}, v{cur+i}")
    G = T.get(2, 2)
    cfma(k, G, G+1, L16, L16+1, AG, AG+2, AG+1, AG+3)
    ex = T.get(); exr = T.get()
    k(f"s_lshl_b32 s54, s4, 9\nv_lshl_add_u32 v{ex}, v1, 3, s54\nv_lshl_add_u32 v{exr}, v{vc}, 3, s54")
    k(f"ds_write_b64 v{ex}, v[{G}:{G+1}]\ns_waitcnt lgkmcnt(0)")
    GG = T.get(8, 2)
    for h in range(4): k(f"ds_read_b64 v[{GG+2*h}:{GG+2*h+1}], v{exr} offset:{128*h}")
    k("s_waitcnt lgkmcnt(0)")
    P2 = T.get(2, 2); P3 = T.get(2, 2); TOT = T.get(4, 2); PEX = T.get(2, 2)
    cfma(k, P2, P2+1, L32, L32+1, GG, GG+1, GG+2, GG+3)
    cfma(k, P3, P3+1, L32, L32+1, P2, P2+1, GG+4, GG+5)
    cfma(k, TOT, TOT+2, L32, L32+1, P3, P3+1, GG+6, GG+7)
    k(f"v_mov_b32 v{TOT+1}, v{vtag}\nv_mov_b32 v{TOT+3}, v{vtag}")
    pa = T.get()
    k(f"v_add_u32 v{pa}, s60, v{vc}\nv_lshlrev_b32 v{pa}, 4, v{pa}")
    k(f"s_mul_i32 s54, s52, {640*16}\ns_add_u32 s54, s54, {WS_AGG}")
    k("s_mov_b64 s[66:67], exec\ns_mov_b64 exec, 0xffff")
    k(f"buffer_store_dwordx4 v[{TOT}:{TOT+3}], v{pa}, s[20:23], s54 offen sc1")
    k("s_mov_b64 exec, s[66:67]")
    k(f"v_mov_b32 v{PEX}, 0\nv_mov_b32 v{PEX+1}, 0")
    for h, src in ((1, GG), (2, P2), (3, P3)):
        k(f"v_cmp_eq_u32 vcc, {h}, v{vh}\ns_nop 1\nv_cndmask_b32 v{PEX}, v{PEX}, v{src}, vcc\nv_cndmask_b32 v{PEX+1}, v{PEX+1}, v{src+1}, vcc")
    stamp(5)
    m_side = T.mark()
    gen_side(k, T, vc, vh, t)
    T.release(m_side)
    stamp(6)
    LB = T.get(16, 4); CAR = T.get(2, 2); la = T.get()
    k(f"v_mov_b32 v{CAR}, 0\nv_mov_b32 v{CAR+1}, 0")
    NOLB = k.label("nolb")
    k(f"s_cmp_eq_u32 s52, 0\ns_cbranch_scc1 {NOLB}")
    k(f"v_mul_u32_u24 v{la}, {640*16}, v{vh}\nv_add_u32 v{la}, v{la}, v{pa}")
    k(f"s_mov_b32 s69, 0x100000")
    POLL = k.label("poll"); GOT = k.label("got")
    k(f"{POLL}:")
    for z in range(4):
        k(f"s_mov_b32 s54, {WS_AGG + 4*z*640*16}")
        k(f"buffer_load_dwordx4 v[{LB+4*z}:{LB+4*z+3}], v{la}, s[20:23], s54 offen sc1")
    k("s_waitcnt vmcnt(0)")
    k("s_mov_b64 s[70:71], -1")
    for z in range(4):
        k(f"v_cmp_eq_u32 s[72:73], v{LB+4*z+1}, v{vtag}\nv_cmp_eq_u32 s[74:75], v{LB+4*z+3}, v{vtag}")
        k(f"v_add_u32 v{t[0]}, {4*z}, v{vh}\nv_cmp_le_u32 s[76:77], s52, v{t[0]}")
        k("s_and_b64 s[72:73], s[72:73], s[74:75]\ns_or_b64 s[72:73], s[72:73], s[76:77]\ns_and_b64 s[70:71], s[70:71], s[72:73]")
    k(f"s_cmp_eq_u64 s[70:71], -1\ns_cbranch_scc1 {GOT}")
    k(f"s_sleep 2\ns_sub_u32 s69, s69, 1\ns_cmp_lg_u32 s69, 0\ns_cbranch_scc1 {POLL}")
    k(f"{GOT}:")
    for z in range(4):
        k(f"v_add_u32 v{t[0]}, {4*z}, v{vh}\nv_cmp_gt_u32 vcc, s52, v{t[0]}\ns_nop 1")
        k(f"v_cndmask_b32 v{LB+4*z}, 0, v{LB+4*z}, vcc\nv_cndmask_b32 v{LB+4*z+2}, 0, v{LB+4*z+2}, vcc")
        cfma(k, CAR, CAR+1, LW+2*z, LW+2*z+1, LB+4*z, LB+4*z+2, CAR, CAR+1)
    k(f"ds_write_b64 v{ex}, v[{CAR}:{CAR+1}]\ns_waitcnt lgkmcnt(0)")
    for h in range(4): k(f"ds_read_b64 v[{GG+2*h}:{GG+2*h+1}], v{exr} offset:{128*h}")
    k("s_waitcnt lgkmcnt(0)")
    k(f"v_add_f32 v{CAR}, v{GG}, v{GG+2}\nv_add_f32 v{CAR+1}, v{GG+1}, v{GG+3}\nv_add_f32 v{GG+4}, v{GG+4}, v{GG+6}\nv_add_f32 v{GG+5}, v{GG+5}, v{GG+7}")
    k(f"v_add_f32 v{CAR}, v{CAR}, v{GG+4}\nv_add_f32 v{CAR+1}, v{CAR+1}, v{GG+5}")
    k(f"{NOLB}:")
    stamp(7)
    IA = T.get(2, 2)
    cfma(k, IA, IA+1, Lh, Lh+1, CAR, CAR+1, PEX, PEX+1)
    cfma(k, Sa+1, Sa+3, L16, L16+1, IA, IA+1, AG, AG+2)
    k(f"v_mov_b32 v{Sa}, v{IA}\nv_mov_b32 v{Sa+2}, v{IA+1}")
    HS = 16384; HR = 272
    k("s_barrier")
    ha = T.get(); cv = T.get(2, 2)
    k(f"v_mul_u32_u24 v{ha}, {32*HR}, v{vh}\nv_lshl_add_u32 v{ha}, v{vc}, 2, v{ha}\ns_lshl_b32 s54, s4, 6\ns_add_u32 s54, s54, {HS}\nv_add_u32 v{ha}, s54, v{ha}")
    cur, nxt = Sa, Sb
    for s_ in range(16):
        m = s_ >> 1; pr = s_ & 1
        step(nxt, cur, accR + 4*m + 2*pr, accI + 4*m + 2*pr)
        cur, nxt = nxt, cur
        k(f"v_cvt_pk_bf16_f32 v{cv}, v{cur}, v{cur+2}\nv_cvt_pk_bf16_f32 v{cv+1}, v{cur+1}, v{cur+3}")
        k(f"ds_write_b32 v{ha}, v{cv} offset:{s_*HR}\nds_write_b32 v{ha}, v{cv+1} offset:{(16+s_)*HR}")
    k("s_waitcnt lgkmcnt(0)")
    k("s_barrier")
    k(f"s_lshl_b32 s54, s4, 5\nv_add_u32 v{t[0]}, s54, v{vh}\nv_mul_u32_u24 v{t[1]}, {HR}, v{t[0]}\nv_lshl_add_u32 v{t[1]}, v{vc}, 4, v{t[1]}\nv_add_u32 v{t[1]}, {HS}, v{t[1]}")
    for z in range(8):
        k(f"ds_read_b128 v[{accR+4*z}:{accR+4*z+3}], v{t[1]} offset:{4*z*HR}")
    k(f"v_mul_u32_u24 v{t[0]}, 2560, v{t[0]}\nv_lshl_add_u32 v{t[0]}, v{vc}, 4, v{t[0]}")
    k(f"s_lshl_b32 s54, s52, 7\ns_mul_i32 s54, s54, 2560\ns_lshl_b32 s55, s53, 8\ns_add_u32 s54, s54, s55")
    k("s_waitcnt lgkmcnt(0)")
    for z in range(8):
        k(f"s_add_u32 s55, s54, {4*z*2560}")
        k(f"buffer_store_dwordx4 v[{accR+4*z}:{accR+4*z+3}], v{t[0]}, s[20:23], s55 offen {store_flags}")
    stamp(8)
    return max(R.hi, T.hi)

def gen_side(k, T, vc, vh, t):
    CT = 49152
    m0_ = T.mark()
    pr = T.get(9); u = [T.get() for _ in range(6)]; lb = T.get(2, 2); cf = T.get(2, 2)
    k(f"v_lshlrev_b32 v{u[0]}, 1, v0")
    for z in range(3):
        for i, srd in enumerate((28, 32, 36)):
            k(f"buffer_load_ushort v{pr+3*z+i}, v{u[0]}, s[{srd}:{srd+3}], 0 offen offset:{512*z}")
    CR = T.get(5); CI = T.get(5)
    k(f"s_lshl_b32 s54, s2, 2\ns_add_u32 s54, s54, s4\ns_mul_i32 s55, s54, 1280")
    k(f"v_lshlrev_b32 v{u[1]}, 2, v1")
    for z in range(5):
        k(f"buffer_load_dword v{CR+z}, v{u[1]}, s[40:43], s55 offen offset:{256*z}\nbuffer_load_dword v{CI+z}, v{u[1]}, s[44:47], s55 offen offset:{256*z}")
    k("s_waitcnt vmcnt(10)")
    for z in range(3):
        a, b, c_ = pr+3*z, pr+3*z+1, pr+3*z+2
        k(f"v_lshlrev_b32 v{a}, 16, v{a}\nv_lshlrev_b32 v{b}, 16, v{b}\nv_lshlrev_b32 v{c_}, 16, v{c_}")
        k(f"v_mul_f32 v{c_}, {LOG2E:#x}, v{c_}\nv_exp_f32 v{c_}, v{c_}\ns_nop 0\nv_cvt_pk_bf16_f32 v{c_}, v{c_}, v{c_}\nv_lshlrev_b32 v{c_}, 16, v{c_}")
        k(f"v_mul_f32 v{u[2]}, v{c_}, v{a}\nv_mul_f32 v{u[3]}, v{c_}, v{b}\nv_mul_f32 v{u[2]}, {LOG2E:#x}, v{u[2]}\nv_mul_f32 v{u[3]}, {INV2PI:#x}, v{u[3]}")
        direct_pow(k, lb, None, u[2], u[3], u[4], u[5])
        k(f"v_add_f32 v{lb}, -1.0, v{lb}")
        k(f"v_mul_f32 v{u[4]}, v{a}, v{a}\nv_fmac_f32 v{u[4]}, v{b}, v{b}\nv_rcp_f32 v{u[4]}, v{u[4]}")
        k(f"v_mul_f32 v{cf}, v{lb}, v{a}\nv_fmac_f32 v{cf}, v{lb+1}, v{b}")
        k(f"v_mul_f32 v{cf+1}, v{lb+1}, v{a}\nv_fma_f32 v{cf+1}, -v{lb}, v{b}, v{cf+1}")
        k(f"v_add_f32 v{u[4]}, v{u[4]}, v{u[4]}")
        k(f"v_mul_f32 v{cf}, v{cf}, v{u[4]}\nv_mul_f32 v{cf+1}, v{cf+1}, v{u[4]}")
        k(f"v_lshlrev_b32 v{u[5]}, 3, v0")
        if z == 2:
            k("v_cmp_gt_u32 vcc, 128, v0\ns_and_saveexec_b64 s[66:67], vcc")
        k(f"ds_write_b64 v{u[5]}, v[{cf}:{cf+1}] offset:{CT + 2048*z}")
        if z == 2:
            k("s_mov_b64 exec, s[66:67]")
    k("s_waitcnt lgkmcnt(0)")
    k("s_barrier")
    CF = T.get(4, 4); o = T.get(2, 2)
    k(f"v_lshlrev_b32 v{u[2]}, 4, v1")
    k(f"v_lshlrev_b32 v{u[3]}, 3, v1")
    k(f"s_mul_i32 s55, s54, 2560\ns_add_u32 s55, s55, {WS_CP}")
    k("s_waitcnt vmcnt(0)")
    for z in range(5):
        k(f"ds_read_b128 v[{CF}:{CF+3}], v{u[2]} offset:{CT + 1024*z}")
        lo16(k, u[0], CR+z); lo16(k, u[1], CI+z); hi16(k, u[4], CR+z); hi16(k, u[5], CI+z)
        k("s_waitcnt lgkmcnt(0)")
        k(f"v_mul_f32 v{lb}, v{u[0]}, v{CF}\nv_fma_f32 v{lb}, -v{u[1]}, v{CF+1}, v{lb}")
        k(f"v_mul_f32 v{lb+1}, -v{u[0]}, v{CF+1}\nv_fma_f32 v{lb+1}, -v{u[1]}, v{CF}, v{lb+1}")
        k(f"v_cvt_pk_bf16_f32 v{o}, v{lb}, v{lb+1}")
        k(f"v_mul_f32 v{lb}, v{u[4]}, v{CF+2}\nv_fma_f32 v{lb}, -v{u[5]}, v{CF+3}, v{lb}")
        k(f"v_mul_f32 v{lb+1}, -v{u[4]}, v{CF+3}\nv_fma_f32 v{lb+1}, -v{u[5]}, v{CF+2}, v{lb+1}")
        k(f"v_cvt_pk_bf16_f32 v{o+1}, v{lb}, v{lb+1}")
        k(f"buffer_store_dwordx2 v[{o}:{o+1}], v{u[3]}, s[20:23], s55 offen offset:{512*z}")
        k("s_nop 0")
    T.release(m0_)
    NG = k.label("ng")
    k(f"s_cmp_ge_u32 s53, 8\ns_cbranch_scc1 {NG}")
    GW = T.get(10); XR_ = T.get(20); u = [T.get() for _ in range(6)]; gwd = T.get(5)
    k(f"v_lshlrev_b32 v{u[0]}, 2, v1")
    k("s_lshl_b32 s54, s52, 7\ns_lshl_b32 s55, s53, 4\ns_add_u32 s54, s54, s55\ns_lshl_b32 s55, s4, 2\ns_add_u32 s54, s54, s55")
    k("s_mul_i32 s55, s54, 1280")
    for z in range(5):
        k(f"buffer_load_dword v{gwd+z}, v{u[0]}, s[48:51], 0 offen offset:{256*z}")
    for r in range(4):
        for z in range(5):
            k(f"buffer_load_dword v{XR_+5*r+z}, v{u[0]}, s[8:11], s55 offen offset:{256*z}")
        k("s_add_u32 s55, s55, 1280")
    k("s_waitcnt vmcnt(0)")
    for z in range(5):
        lo16(k, GW+2*z, gwd+z); hi16(k, GW+2*z+1, gwd+z)
    for r in range(4):
        acc = u[5]
        for z in range(5):
            xs = XR_+5*r+z
            lo16(k, u[1], xs); hi16(k, u[2], xs)
            k(f"v_mul_f32 v{u[1]}, v{u[1]}, v{GW+2*z}\nv_mul_f32 v{u[2]}, v{u[2]}, v{GW+2*z+1}\nv_cvt_pk_bf16_f32 v{u[3]}, v{u[1]}, v{u[2]}")
            lo16(k, u[1], u[3]); hi16(k, u[2], u[3])
            if z == 0: k(f"v_add_f32 v{acc}, v{u[1]}, v{u[2]}")
            else: k(f"v_add_f32 v{acc}, v{acc}, v{u[1]}\nv_add_f32 v{acc}, v{acc}, v{u[2]}")
        for sh in (8, 4, 2, 1):
            k("s_nop 1")
            k(f"v_add_f32_dpp v{acc}, v{acc}, v{acc} row_ror:{sh} row_mask:0xf bank_mask:0xf")
        k("s_nop 1")
        k(f"v_readlane_b32 s72, v{acc}, 0\nv_readlane_b32 s73, v{acc}, 16\nv_readlane_b32 s74, v{acc}, 32\nv_readlane_b32 s75, v{acc}, 48")
        k("s_nop 1")
        k(f"v_mov_b32 v{u[1]}, s72\nv_add_f32 v{u[1]}, s73, v{u[1]}\nv_add_f32 v{u[1]}, s74, v{u[1]}\nv_add_f32 v{u[1]}, s75, v{u[1]}")
        k(f"v_cvt_pk_bf16_f32 v{u[1]}, v{u[1]}, v{u[1]}\nv_lshlrev_b32 v{u[1]}, 16, v{u[1]}")
        k(f"v_mul_f32 v{u[1]}, {NLOG2E:#x}, v{u[1]}\nv_exp_f32 v{u[1]}, v{u[1]}\ns_nop 0\nv_add_f32 v{u[1]}, 1.0, v{u[1]}\nv_rcp_f32 v{u[1]}, v{u[1]}\ns_nop 0")
        k(f"v_cvt_pk_bf16_f32 v{u[1]}, v{u[1]}, v{u[1]}\nv_lshlrev_b32 v{XR_+r}, 16, v{u[1]}")
    k(f"s_lshl_b32 s54, s54, 2\ns_add_u32 s54, s54, {WS_G}\nv_mov_b32 v{u[0]}, 0")
    k("s_mov_b64 s[66:67], exec\ns_mov_b64 exec, 1")
    k(f"buffer_store_dwordx4 v[{XR_}:{XR_+3}], v{u[0]}, s[20:23], s54 offen")
    k("s_mov_b64 exec, s[66:67]")
    k(f"{NG}:")
    T.release(m0_)

if __name__ == "__main__":
    import sys
    k = Kern("ka_kernel", 480, 256, lds=81920, vgpr=256, sgpr=100)
    END = k.name + "_end"
    def stamp(i):
        k(f"s_memtime s[{80+2*i}:{81+2*i}]\ns_waitcnt lgkmcnt(0)")
    k(f"s_cmp_ge_u32 s2, 160\ns_cbranch_scc1 {END}")
    k("s_memtime s[80:81]")
    wave_id(k, 4, 1)
    k("v_and_b32 v1, 63, v0")
    hi = gen_A(k, stamp=stamp)
    print("A vgprs", hi)
    k("s_waitcnt vmcnt(0)")
    stamp(9)
    k(f"s_cmp_lg_u32 s4, 0\ns_cbranch_scc1 {END}")
    k("v_cmp_eq_u32 vcc, 0, v1\ns_and_saveexec_b64 s[50:51], vcc")
    k(f"s_cbranch_execz {END}")
    k("s_lshl_b32 s59, s2, 6\ns_add_u32 s59, s59, 0xD80000\nv_mov_b32 v3, s59")
    for i in range(1, 10):
        k(f"s_sub_u32 s58, s{80+2*i}, s80\nv_mov_b32 v2, s58\nbuffer_store_dword v2, v3, s[20:23], 0 offen offset:{4*i}")
    k(f"{END}:\ns_endpgm")
    build([k], [k], sys.argv[1])
```

```python
from common import *
from ka import direct_pow, cfma
UN = 16384
DBG_FB = 64

def slice_off(j_it):
    return j_it

def gen_A3(k, stamp, END, store_flags=""):
    k("s_load_dwordx16 s[8:23], s[0:1], 0\ns_load_dwordx2 s[24:25], s[0:1], 144\ns_load_dwordx4 s[28:31], s[0:1], 160")
    k("s_and_b32 s68, s2, 7\ns_lshr_b32 s69, s2, 3\ns_mul_i32 s70, s69, 52\ns_lshr_b32 s70, s70, 8")
    k("s_mul_i32 s71, s70, 5\ns_sub_u32 s71, s69, s71")
    k("s_lshr_b32 s5, s68, 1\ns_lshl_b32 s5, s5, 2\ns_add_u32 s5, s5, s70")
    k("s_and_b32 s6, s68, 1\ns_mul_i32 s6, s6, 5\ns_add_u32 s6, s6, s71")
    PROD = k.label("aprod"); AEND = k.label("aend")
    k(f"s_cmp_ge_u32 s4, 4\ns_cbranch_scc1 {PROD}")
    R = Regs(2, 168)
    vc = R.get(); vh = R.get()
    accR = R.get(32, 4); accI = R.get(32, 4)
    aA = R.get(); aA1 = R.get(); aB = R.get(); aB1 = R.get()
    t = [R.get() for _ in range(5)]
    L1 = R.get(2, 2); L16 = R.get(2, 2); L32 = R.get(2, 2); Lh = R.get(2, 2); LW = R.get(8, 2); CO = R.get(2, 2)
    aL = R.get(); th = R.get(); vtag = R.get(2, 2); prm = R.get(3)
    A = R.get(32, 4); BB = [R.get(8, 4) for _ in range(3)]
    k(f"v_and_b32 v{vc}, 15, v1\nv_lshrrev_b32 v{vh}, 4, v1")
    k("s_lshl_b32 s74, s6, 2\ns_add_u32 s74, s74, s4\ns_lshl_b32 s74, s74, 4")
    k("s_lshl_b32 s75, s4, 12")
    k(f"v_add_u32 v{t[0]}, s74, v{vc}\nv_lshlrev_b32 v{t[0]}, 1, v{t[0]}")
    k("s_waitcnt lgkmcnt(0)")
    mk_srd(k, 52, 10, 1280); mk_srd(k, 56, 12, 1280); mk_srd(k, 60, 22, 1280); mk_srd(k, 44, 30, WS_SIZE2)
    k(f"buffer_load_ushort v{prm}, v{t[0]}, s[52:55], 0 offen\nbuffer_load_ushort v{prm+1}, v{t[0]}, s[56:59], 0 offen\nbuffer_load_ushort v{prm+2}, v{t[0]}, s[60:63], 0 offen")
    k(f"v_lshrrev_b32 v{t[0]}, 2, v{vc}\nv_and_b32 v{t[1]}, 1, v{vc}\nv_lshl_add_u32 v{t[2]}, v{t[0]}, 1, v{t[1]}")
    k(f"v_lshlrev_b32 v{t[3]}, 4, v{t[2]}")
    k(f"v_lshrrev_b32 v{t[4]}, 1, v{vc}\nv_and_b32 v{t[4]}, 1, v{t[4]}\nv_add_u32 v{t[3]}, v{t[3]}, v{t[4]}")
    k(f"v_xor_b32 v{t[2]}, v{t[2]}, v{vh}\nv_lshlrev_b32 v{t[2]}, 4, v{t[2]}\nv_lshl_add_u32 v{aA}, v{t[3]}, 7, v{t[2]}")
    k(f"v_xor_b32 v{aA1}, 64, v{aA}")
    k(f"v_lshrrev_b32 v{t[2]}, 1, v{vc}\nv_xor_b32 v{t[2]}, v{t[2]}, v{vh}\nv_lshlrev_b32 v{t[2]}, 4, v{t[2]}\nv_lshl_add_u32 v{aB}, v{vc}, 7, v{t[2]}")
    k(f"v_add_u32 v{aB}, s75, v{aB}\nv_add_u32 v{aB}, {3*UN}, v{aB}\nv_xor_b32 v{aB1}, 64, v{aB}")
    for i in range(32):
        k(f"v_mov_b32 v{accR+i}, 0\nv_mov_b32 v{accI+i}, 0")
    k("s_waitcnt vmcnt(0)")
    k(f"v_lshlrev_b32 v{prm}, 16, v{prm}\nv_lshlrev_b32 v{prm+1}, 16, v{prm+1}\nv_lshlrev_b32 v{prm+2}, 16, v{prm+2}")
    k(f"v_mul_f32 v{prm+2}, {LOG2E:#x}, v{prm+2}\nv_exp_f32 v{prm+2}, v{prm+2}\ns_nop 0\nv_cvt_pk_bf16_f32 v{prm+2}, v{prm+2}, v{prm+2}\nv_lshlrev_b32 v{prm+2}, 16, v{prm+2}")
    k(f"v_mul_f32 v{aL}, v{prm+2}, v{prm}\nv_mul_f32 v{th}, v{prm+2}, v{prm+1}\nv_mul_f32 v{aL}, {LOG2E:#x}, v{aL}\nv_mul_f32 v{th}, {INV2PI:#x}, v{th}")
    lam_code = []
    class KK:
        def __call__(self, txt): lam_code.extend([l for l in txt.split("\n") if l.strip()])
    kk = KK()
    direct_pow(kk, L1, None, aL, th, t[0], t[1])
    kk(f"v_add_f32 v{t[2]}, -1.0, v{L1}\nv_mul_f32 v{t[3]}, v{prm}, v{prm}\nv_fmac_f32 v{t[3]}, v{prm+1}, v{prm+1}\nv_rcp_f32 v{t[3]}, v{t[3]}")
    kk(f"v_mul_f32 v{CO}, v{t[2]}, v{prm}\nv_fmac_f32 v{CO}, v{L1+1}, v{prm+1}\nv_mul_f32 v{CO+1}, v{L1+1}, v{prm}\nv_fma_f32 v{CO+1}, -v{t[2]}, v{prm+1}, v{CO+1}")
    kk(f"v_add_f32 v{t[3]}, v{t[3]}, v{t[3]}\nv_mul_f32 v{CO}, v{CO}, v{t[3]}\nv_mul_f32 v{CO+1}, v{CO+1}, v{t[3]}")
    lam_bounds = [len(lam_code)]
    direct_pow(kk, L16, 16, aL, th, t[0], t[1])
    lam_bounds.append(len(lam_code))
    direct_pow(kk, L32, 32, aL, th, t[0], t[1])
    lam_bounds.append(len(lam_code))
    kk(f"v_cvt_f32_u32 v{t[2]}, v{vh}\nv_mul_f32 v{t[2]}, {f2u(32.0):#x}, v{t[2]}")
    direct_pow(kk, Lh, t[2], aL, th, t[0], t[1], True)
    lam_bounds.append(len(lam_code))
    for z in range(4):
        kk(f"s_sub_i32 s23, s5, {1 + 4*z}\nv_sub_u32 v{t[2]}, s23, v{vh}\nv_max_i32 v{t[2]}, 0, v{t[2]}\nv_cvt_f32_i32 v{t[2]}, v{t[2]}\nv_mul_f32 v{t[2]}, {f2u(128.0):#x}, v{t[2]}")
        direct_pow(kk, LW + 2*z, t[2], aL, th, t[0], t[1], True)
    cut = lam_bounds[3]
    for l in lam_code[:cut]: k(l)
    lam_left = lam_code[cut:]
    def lam_take(n):
        out = lam_left[:n]; del lam_left[:n]
        return "\n".join(out) if out else None
    stamp(1)
    def rdB(buf, s_, ks):
        rb = aB1 if ks else aB; bo = (s_ % 2) * UN
        k(f"ds_read_b128 v[{buf}:{buf+3}], v{rb} offset:{bo}\nds_read_b128 v[{buf+4}:{buf+7}], v{rb} offset:{bo+2048}")
    def rdA(m, s_, ks):
        ra = aA1 if ks else aA
        return f"ds_read_b128 v[{A+4*m}:{A+4*m+3}], v{ra} offset:{(s_ % 3)*UN + 256*m}"
    def block(B, nxt, fills):
        for m in range(8):
            if nxt is not None or True:
                pass
            k(f"v_mfma_f32_16x16x32_bf16 v[{accR+4*m}:{accR+4*m+3}], v[{A+4*m}:{A+4*m+3}], v[{B}:{B+3}], v[{accR+4*m}:{accR+4*m+3}]")
            k(f"v_mfma_f32_16x16x32_bf16 v[{accI+4*m}:{accI+4*m+3}], v[{A+4*m}:{A+4*m+3}], v[{B+4}:{B+7}], v[{accI+4*m}:{accI+4*m+3}]")
            if nxt is not None: k(rdA(m, *nxt))
            f = fills()
            if f: k(f)
    k("s_barrier")
    stamp(2)
    SC = 2 * UN; TS = 256
    rd = A; wr = A + 16
    for q in range(2):
        k(f"v_lshrrev_b32 v{t[0]}, 5, v1\ns_lshl_b32 s68, s4, 1\ns_add_u32 s68, s68, {8*q}\nv_add_u32 v{t[0]}, s68, v{t[0]}")
        k(f"v_and_b32 v{t[1]}, 31, v1\nv_lshrrev_b32 v{t[2]}, 2, v{t[1]}\nv_lshrrev_b32 v{t[3]}, 1, v{t[0]}\nv_xor_b32 v{t[2]}, v{t[2]}, v{t[3]}")
        k(f"v_lshlrev_b32 v{t[2]}, 4, v{t[2]}\nv_and_b32 v{t[3]}, 3, v{t[1]}\nv_lshl_add_u32 v{t[2]}, v{t[3]}, 2, v{t[2]}\nv_lshl_add_u32 v{t[2]}, v{t[0]}, 10, v{t[2]}")
        for e in range(8):
            k(f"ds_read_b32 v{rd+8*q+e}, v{t[2]} offset:{128*e}")
        dst = BB[q]
        k(f"v_sub_u32 v{t[0]}, 15, v{t[0]}\nv_and_b32 v{t[3]}, 15, v{t[1]}\nv_xor_b32 v{t[0]}, v{t[0]}, v{t[3]}\nv_lshlrev_b32 v{t[0]}, 4, v{t[0]}\nv_mul_u32_u24 v{dst}, {2*TS}, v{t[1]}\nv_add_u32 v{dst}, v{dst}, v{t[0]}")
        k(f"v_add_u32 v{dst}, {SC}, v{dst}")
    k("s_mov_b32 s68, 0x05040100\ns_mov_b32 s69, 0x07060302")
    k("s_waitcnt lgkmcnt(0)")
    for q in range(2):
        for half, sel in ((0, "s68"), (1, "s69")):
            o = wr + 8*q + 4*half
            for dw in range(4):
                k(f"v_perm_b32 v{o+dw}, v{rd+8*q+6-2*dw}, v{rd+8*q+7-2*dw}, {sel}")
            k(f"ds_write_b128 v{BB[q]}, v[{o}:{o+3}] offset:{half*TS}")
    k("s_waitcnt lgkmcnt(0)")
    k("s_barrier")
    LT = LdsTrack(k)
    def rdBt(q):
        s_, ks = q >> 1, q & 1
        buf = BB[q % 3]; rb = aB1 if ks else aB; bo = (s_ % 2) * UN
        LT.issue(f"ds_read_b128 v[{buf}:{buf+3}], v{rb} offset:{bo}", ("B", q))
        LT.issue(f"ds_read_b128 v[{buf+4}:{buf+7}], v{rb} offset:{bo+2048}", ("B", q))
    def rdAt(m, q):
        LT.issue(rdA(m, q >> 1, q & 1), ("A", m))
    def mm(m, q):
        B = BB[q % 3]
        LT.need(("A", m), ("B", q))
        k(f"v_mfma_f32_16x16x32_bf16 v[{accR+4*m}:{accR+4*m+3}], v[{A+4*m}:{A+4*m+3}], v[{B}:{B+3}], v[{accR+4*m}:{accR+4*m+3}]")
        k(f"v_mfma_f32_16x16x32_bf16 v[{accI+4*m}:{accI+4*m+3}], v[{A+4*m}:{A+4*m+3}], v[{B+4}:{B+7}], v[{accI+4*m}:{accI+4*m+3}]")
    rdBt(0); rdBt(1)
    for m in range(8): rdAt(m, 0)
    k("s_barrier")
    for s_ in range(10):
        q0 = 2*s_
        if s_ + 2 <= 9:
            LT.need(("B", q0), ("B", q0 + 1))
            k("s_barrier")
        for m in range(8):
            mm(m, q0)
            rdAt(m, q0 + 1)
            f = lam_take(2)
            if f: k(f)
        if s_ < 9:
            for m in range(3): mm(m, q0 + 1)
            LT.all_done()
            k("s_barrier")
            if s_ == 1: stamp(3)
            if s_ == 4: stamp(4)
            rdBt(q0 + 2); rdBt(q0 + 3)
            for m in range(3): rdAt(m, q0 + 2)
            for m in range(3, 8):
                mm(m, q0 + 1)
                rdAt(m, q0 + 2)
                f = lam_take(2)
                if f: k(f)
        else:
            for m in range(8): mm(m, q0 + 1)
    assert not lam_left, len(lam_left)
    k("s_barrier")
    stamp(5)
    k(f"v_mov_b32 v{t[1]}, 0\nds_read_b32 v{vtag}, v{t[1]} offset:52224")
    T = Regs(A, 168)
    Sa = T.get(4, 2); Sb = T.get(4, 2); tt = T.get(4, 2)
    LAM = f"v[{L1}:{L1+1}]"
    def step(dst, src, zr, zi):
        k(f"v_pk_fma_f32 v[{tt}:{tt+1}], {LAM}, v[{src}:{src+1}], v[{zr}:{zr+1}] op_sel:[0,0,0] op_sel_hi:[0,1,1]")
        k(f"v_pk_fma_f32 v[{tt+2}:{tt+3}], {LAM}, v[{src+2}:{src+3}], v[{zi}:{zi+1}] op_sel:[0,0,0] op_sel_hi:[0,1,1]")
        k(f"v_pk_fma_f32 v[{dst}:{dst+1}], {LAM}, v[{src+2}:{src+3}], v[{tt}:{tt+1}] op_sel:[1,0,0] op_sel_hi:[1,1,1] neg_lo:[1,0,0] neg_hi:[1,0,0]")
        k(f"v_pk_fma_f32 v[{dst+2}:{dst+3}], {LAM}, v[{src}:{src+1}], v[{tt+2}:{tt+3}] op_sel:[1,0,0] op_sel_hi:[1,1,1]")
    k("s_nop 7")
    k(f"v_mov_b32 v{Sa}, v{accR}\nv_mov_b32 v{Sa+1}, v{accR+1}\nv_mov_b32 v{Sa+2}, v{accI}\nv_mov_b32 v{Sa+3}, v{accI+1}")
    cur, nxt = Sa, Sb
    for s_ in range(1, 16):
        m = s_ >> 1; pr = s_ & 1
        step(nxt, cur, accR + 4*m + 2*pr, accI + 4*m + 2*pr)
        cur, nxt = nxt, cur
    AG = T.get(4, 2)
    for i in range(4): k(f"v_mov_b32 v{AG+i}, v{cur+i}")
    G = T.get(2, 2)
    cfma(k, G, G+1, L16, L16+1, AG, AG+2, AG+1, AG+3)
    ex = T.get(); exr = T.get()
    k(f"s_lshl_b32 s68, s4, 9\nv_lshl_add_u32 v{ex}, v1, 3, s68\nv_lshl_add_u32 v{exr}, v{vc}, 3, s68")
    k(f"ds_write_b64 v{ex}, v[{G}:{G+1}]\ns_waitcnt lgkmcnt(0)")
    GG = T.get(8, 2)
    for h in range(4): k(f"ds_read_b64 v[{GG+2*h}:{GG+2*h+1}], v{exr} offset:{128*h}")
    k("s_waitcnt lgkmcnt(0)")
    P2 = T.get(2, 2); P3 = T.get(2, 2); TOT = T.get(4, 2); PEX = T.get(2, 2)
    cfma(k, P2, P2+1, L32, L32+1, GG, GG+1, GG+2, GG+3)
    cfma(k, P3, P3+1, L32, L32+1, P2, P2+1, GG+4, GG+5)
    cfma(k, TOT, TOT+2, L32, L32+1, P3, P3+1, GG+6, GG+7)
    k(f"v_mov_b32 v{TOT+1}, v{vtag}\nv_mov_b32 v{TOT+3}, v{vtag}")
    pa = T.get()
    k(f"v_add_u32 v{pa}, s74, v{vc}\nv_lshlrev_b32 v{pa}, 4, v{pa}")
    k(f"s_mul_i32 s68, s5, {640*16}\ns_add_u32 s68, s68, {WS_AGG}")
    k("s_mov_b64 s[10:11], exec\ns_mov_b64 exec, 0xffff")
    k(f"buffer_store_dwordx4 v[{TOT}:{TOT+3}], v{pa}, s[44:47], s68 offen sc1")
    k("s_mov_b64 exec, s[10:11]")
    k(f"v_mov_b32 v{PEX}, 0\nv_mov_b32 v{PEX+1}, 0")
    for h, src in ((1, GG), (2, P2), (3, P3)):
        k(f"v_cmp_eq_u32 vcc, {h}, v{vh}\ns_nop 1\nv_cndmask_b32 v{PEX}, v{PEX}, v{src}, vcc\nv_cndmask_b32 v{PEX+1}, v{PEX+1}, v{src+1}, vcc")
    stamp(6)
    CAR = T.get(2, 2); m_lb = T.mark(); LB = T.get(16, 4); la = T.get()
    k(f"v_mov_b32 v{CAR}, 0\nv_mov_b32 v{CAR+1}, 0")
    NOLB = k.label("nolb")
    k(f"s_cmp_eq_u32 s5, 0\ns_cbranch_scc1 {NOLB}")
    k(f"v_mul_u32_u24 v{la}, {640*16}, v{vh}\nv_add_u32 v{la}, v{la}, v{pa}")
    k(f"s_mov_b32 s13, 0x100000")
    POLL = k.label("poll"); GOT = k.label("got")
    k(f"{POLL}:")
    for z in range(4):
        k(f"s_mov_b32 s68, {WS_AGG + 4*z*640*16}")
        k(f"buffer_load_dwordx4 v[{LB+4*z}:{LB+4*z+3}], v{la}, s[44:47], s68 offen sc1")
    k("s_waitcnt vmcnt(0)")
    k("s_mov_b64 s[14:15], -1")
    for z in range(4):
        k(f"v_cmp_eq_u32 s[16:17], v{LB+4*z+1}, v{vtag}\nv_cmp_eq_u32 s[18:19], v{LB+4*z+3}, v{vtag}")
        k(f"v_add_u32 v{t[0]}, {4*z}, v{vh}\nv_cmp_le_u32 s[20:21], s5, v{t[0]}")
        k("s_and_b64 s[16:17], s[16:17], s[18:19]\ns_or_b64 s[16:17], s[16:17], s[20:21]\ns_and_b64 s[14:15], s[14:15], s[16:17]")
    k(f"s_cmp_eq_u64 s[14:15], -1\ns_cbranch_scc1 {GOT}")
    k(f"s_sleep 2\ns_sub_u32 s13, s13, 1\ns_cmp_lg_u32 s13, 0\ns_cbranch_scc1 {POLL}")
    k(f"{GOT}:")
    for z in range(4):
        k(f"v_add_u32 v{t[0]}, {4*z}, v{vh}\nv_cmp_gt_u32 vcc, s5, v{t[0]}\ns_nop 1")
        k(f"v_cndmask_b32 v{LB+4*z}, 0, v{LB+4*z}, vcc\nv_cndmask_b32 v{LB+4*z+2}, 0, v{LB+4*z+2}, vcc")
        cfma(k, CAR, CAR+1, LW+2*z, LW+2*z+1, LB+4*z, LB+4*z+2, CAR, CAR+1)
    k(f"ds_write_b64 v{ex}, v[{CAR}:{CAR+1}]\ns_waitcnt lgkmcnt(0)")
    for h in range(4): k(f"ds_read_b64 v[{GG+2*h}:{GG+2*h+1}], v{exr} offset:{128*h}")
    k("s_waitcnt lgkmcnt(0)")
    k(f"v_add_f32 v{CAR}, v{GG}, v{GG+2}\nv_add_f32 v{CAR+1}, v{GG+1}, v{GG+3}\nv_add_f32 v{GG+4}, v{GG+4}, v{GG+6}\nv_add_f32 v{GG+5}, v{GG+5}, v{GG+7}")
    k(f"v_add_f32 v{CAR}, v{CAR}, v{GG+4}\nv_add_f32 v{CAR+1}, v{CAR+1}, v{GG+5}")
    k(f"{NOLB}:")
    stamp(7)
    T.release(m_lb)
    IA = T.get(2, 2)
    cfma(k, IA, IA+1, Lh, Lh+1, CAR, CAR+1, PEX, PEX+1)
    cfma(k, Sa+1, Sa+3, L16, L16+1, IA, IA+1, AG, AG+2)
    k(f"v_mov_b32 v{Sa}, v{IA}\nv_mov_b32 v{Sa+2}, v{IA+1}")
    HS = 16384; HR = 272
    ha = T.get(); cv = T.get(2, 2); hh = T.get(4, 2)
    k(f"v_mul_u32_u24 v{ha}, {32*HR}, v{vh}\nv_lshl_add_u32 v{ha}, v{vc}, 1, v{ha}\ns_lshl_b32 s68, s4, 5\ns_add_u32 s68, s68, {HS}\nv_add_u32 v{ha}, s68, v{ha}")
    COP = f"v[{CO}:{CO+1}]"
    cur, nxt = Sa, Sb
    for s_ in range(16):
        m = s_ >> 1; pr = s_ & 1
        step(nxt, cur, accR + 4*m + 2*pr, accI + 4*m + 2*pr)
        cur, nxt = nxt, cur
        k(f"v_pk_mul_f32 v[{hh}:{hh+1}], {COP}, v[{cur}:{cur+1}] op_sel:[0,0] op_sel_hi:[0,1]")
        k(f"v_pk_mul_f32 v[{hh+2}:{hh+3}], {COP}, v[{cur+2}:{cur+3}] op_sel:[0,0] op_sel_hi:[0,1] neg_lo:[1,0] neg_hi:[1,0]")
        k(f"v_pk_fma_f32 v[{hh}:{hh+1}], {COP}, v[{cur+2}:{cur+3}], v[{hh}:{hh+1}] op_sel:[1,0,0] op_sel_hi:[1,1,1] neg_lo:[1,0,0] neg_hi:[1,0,0]")
        k(f"v_pk_fma_f32 v[{hh+2}:{hh+3}], {COP}, v[{cur}:{cur+1}], v[{hh+2}:{hh+3}] op_sel:[1,0,0] op_sel_hi:[1,1,1] neg_lo:[1,0,0] neg_hi:[1,0,0]")
        k(f"v_cvt_pk_bf16_f32 v{cv}, v{hh}, v{hh+1}\nv_cvt_pk_bf16_f32 v{cv+1}, v{hh+2}, v{hh+3}")
        k(f"ds_write_b16 v{ha}, v{cv} offset:{s_*HR}\nds_write_b16_d16_hi v{ha}, v{cv} offset:{(16+s_)*HR}")
        k(f"ds_write_b16 v{ha}, v{cv+1} offset:{s_*HR+128}\nds_write_b16_d16_hi v{ha}, v{cv+1} offset:{(16+s_)*HR+128}")
    k("s_waitcnt lgkmcnt(0)")
    k("s_barrier")
    k(f"s_lshl_b32 s68, s4, 5\nv_add_u32 v{t[0]}, s68, v{vh}\nv_mul_u32_u24 v{t[1]}, {HR}, v{t[0]}\nv_lshl_add_u32 v{t[1]}, v{vc}, 4, v{t[1]}\nv_add_u32 v{t[1]}, {HS}, v{t[1]}")
    for z in range(8):
        k(f"ds_read_b128 v[{accR+4*z}:{accR+4*z+3}], v{t[1]} offset:{4*z*HR}")
    k(f"v_mul_u32_u24 v{t[0]}, 2560, v{t[0]}\nv_lshl_add_u32 v{t[0]}, v{vc}, 4, v{t[0]}")
    k(f"s_lshl_b32 s68, s5, 7\ns_mul_i32 s68, s68, 2560\ns_lshl_b32 s69, s6, 8\ns_add_u32 s68, s68, s69")
    k("s_waitcnt lgkmcnt(0)")
    for z in range(8):
        k(f"s_add_u32 s69, s68, {4*z*2560}")
        k(f"buffer_store_dwordx4 v[{accR+4*z}:{accR+4*z+3}], v{t[0]}, s[44:47], s69 offen {store_flags}")
    hiC = max(R.hi, T.hi)
    k(f"s_branch {AEND}")

    k(f"{PROD}:")
    R = Regs(2, 168)
    vc = R.get(); vh = R.get()
    vX = [R.get() for _ in range(4)]; vB0 = R.get(); vB1 = R.get()
    t = [R.get() for _ in range(8)]
    vtag = R.get(2, 2)
    GWD = R.get(5); GX = R.get(40, 2)
    TR = R.get(32, 4)
    k("s_sub_u32 s7, s4, 4")
    k(f"v_and_b32 v{vc}, 15, v1\nv_lshrrev_b32 v{vh}, 4, v1")
    k(f"v_lshrrev_b32 v{t[0]}, 3, v1\nv_mul_u32_u24 v{t[0]}, 1280, v{t[0]}\nv_and_b32 v{t[1]}, 7, v1")
    k("s_lshl_b32 s68, s7, 2")
    for f in range(4):
        k(f"s_add_u32 s69, s68, {f}\nv_xor_b32 v{t[2]}, s69, v{t[1]}\nv_lshl_add_u32 v{vX[f]}, v{t[2]}, 4, v{t[0]}")
    k(f"v_xor_b32 v{t[2]}, v{vh}, v{t[1]}\nv_lshl_add_u32 v{vB0}, v{t[2]}, 4, v{t[0]}")
    k(f"v_xor_b32 v{t[2]}, 4, v{t[2]}\nv_lshl_add_u32 v{vB1}, v{t[2]}, 4, v{t[0]}")
    k("s_lshl_b32 s72, s5, 7\ns_lshl_b32 s68, s7, 6\ns_add_u32 s72, s72, s68\ns_mul_i32 s72, s72, 1280")
    k("s_lshl_b32 s73, s6, 6\ns_lshl_b32 s68, s7, 5\ns_add_u32 s73, s73, s68\ns_mul_i32 s73, s73, 1280")
    k("s_lshl_b32 s75, s7, 13")
    k("s_lshl_b32 s76, s6, 7\ns_mov_b32 s79, s76")
    k("s_waitcnt lgkmcnt(0)")
    mk_srd(k, 32, 8, SIZE["x"]); mk_srd(k, 36, 14, SIZE["ABre"]); mk_srd(k, 40, 16, SIZE["ABim"])
    def issueX(sl):
        slot = (sl % 3) * UN
        k("s_add_u32 s77, s72, s76")
        for g in range(8):
            k(f"s_add_u32 m0, s75, {slot + 1024*g}")
            if g: k(f"s_add_u32 s77, s77, {8*1280}")
            else: k("s_nop 0")
            k(f"buffer_load_dwordx4 v{vX[g >> 1]}, s[32:35], s77 offen lds")
        k("s_add_u32 s76, s76, 128\ns_cmp_eq_u32 s76, 1280\ns_cselect_b32 s76, 0, s76")
    def issueB(sl):
        slot = (3 + sl % 2) * UN
        k("s_add_u32 s78, s73, s79")
        for w in range(2):
            for z in range(4):
                k(f"s_add_u32 m0, s75, {slot + 4096*w + 1024*z}")
                row = 16*w + 8*(z & 1)
                k(f"s_add_u32 s77, s78, {row*1280}")
                srd = 36 if z < 2 else 40
                k(f"buffer_load_dwordx4 v{vB0 if z % 2 == 0 else vB1}, s[{srd}:{srd+3}], s77 offen lds")
        k("s_add_u32 s79, s79, 128\ns_cmp_eq_u32 s79, 1280\ns_cselect_b32 s79, 0, s79")
    issueX(0); issueB(0)
    mk_srd(k, 44, 30, WS_SIZE2); mk_srd(k, 48, 28, 256); mk_srd(k, 64, 24, 1280)
    issueX(1); issueB(1)
    NW = k.label("nw")
    k(f"s_or_b32 s68, s7, s5\ns_cmp_lg_u32 s68, 0\ns_cbranch_scc1 {NW}")
    k("s_memrealtime s[8:9]\ns_waitcnt lgkmcnt(0)\ns_or_b32 s8, s8, 1")
    k(f"v_mov_b32 v{vtag}, s8\ns_lshl_b32 s9, s6, 2\nv_mov_b32 v{t[0]}, s9")
    k("s_mov_b64 s[10:11], exec\ns_mov_b64 exec, 1")
    k(f"buffer_store_dword v{vtag}, v{t[0]}, s[48:51], 0 offen sc1")
    k("s_mov_b64 exec, s[10:11]")
    k(f"{NW}:")
    k(f"v_lshlrev_b32 v{t[1]}, 2, v1")
    k("s_lshl_b32 s12, s5, 7\ns_and_b32 s13, s6, 7\ns_lshl_b32 s13, s13, 4\ns_add_u32 s12, s12, s13\ns_lshl_b32 s13, s7, 3\ns_add_u32 s12, s12, s13\ns_mul_i32 s13, s12, 1280")
    k("s_waitcnt vmcnt(16)")
    k("s_barrier")
    k("s_barrier")
    SC = 2 * UN; TS = 256
    k(f"s_lshl_b32 s68, s7, 5\nv_add_u32 v{t[0]}, s68, v{vh}\nv_mul_u32_u24 v{t[3]}, {TS}, v{t[0]}\nv_add_u32 v{t[3]}, {SC}, v{t[3]}")
    for z in range(8):
        k(f"v_lshrrev_b32 v{t[2]}, 1, v{t[0]}\nv_add_u32 v{t[2]}, {2*z}, v{t[2]}\nv_and_b32 v{t[2]}, 15, v{t[2]}\nv_xor_b32 v{t[2]}, v{t[2]}, v{vc}\nv_lshl_add_u32 v{t[2]}, v{t[2]}, 4, v{t[3]}")
        k(f"ds_read_b128 v[{TR+4*z}:{TR+4*z+3}], v{t[2]} offset:{4*z*TS}")
    k(f"v_lshlrev_b32 v{t[0]}, 12, v{t[0]}\nv_lshl_add_u32 v{t[0]}, v{vc}, 4, v{t[0]}")
    k(f"s_lshl_b32 s68, s6, 18\ns_sub_u32 s69, 15, s5\ns_lshl_b32 s69, s69, 8\ns_add_u32 s68, s68, s69\ns_add_u32 s68, s68, {WS_XR}")
    k("s_waitcnt lgkmcnt(0)")
    k("s_barrier")
    issueX(2)
    for z in range(8):
        k(f"s_add_u32 s69, s68, {4*z*4096}")
        k(f"buffer_store_dwordx4 v[{TR+4*z}:{TR+4*z+3}], v{t[0]}, s[44:47], s69 offen sc1")
    k(f"s_lshl_b32 s9, s6, 2\nv_mov_b32 v{t[5]}, s9")
    k(f"buffer_load_dword v{vtag}, v{t[5]}, s[48:51], 0 offen sc1")
    for s_ in range(10):
        if s_ + 2 <= 9:
            k("s_barrier")
            issueB(s_ + 2)
        extra = 0
        if s_ == 2:
            for z in range(5):
                k(f"buffer_load_dword v{GWD+z}, v{t[1]}, s[64:67], 0 offen offset:{256*z}")
            extra += 5
        if s_ in (3, 4, 5, 6):
            r0 = 2 * (s_ - 3)
            for r in range(r0, r0 + 2):
                for z in range(5):
                    k(f"buffer_load_dword v{GX+5*r+z}, v{t[1]}, s[32:35], s13 offen offset:{256*z}")
                k("s_add_u32 s13, s13, 1280")
            extra += 10
        if s_ < 9:
            younger = (8 if s_ + 2 <= 9 else 0) * 2 + extra
            younger += {0: 8, 2: 1, 3: 5, 4: 10, 5: 10, 6: 10, 7: 10}.get(s_, 0) if False else {0: 9, 3: 5, 4: 10, 5: 10, 6: 10, 7: 10}.get(s_, 0)
            k(f"s_waitcnt vmcnt({min(younger, 63)})")
            k("s_barrier")
            if s_ == 1:
                F0 = k.label("f0"); NP = k.label("np"); NG_ = k.label("ngot")
                k(f"s_cmp_lg_u32 s7, 0\ns_cbranch_scc1 {F0}")
                k("s_mov_b32 s70, 0x100000")
                k(f"{NP}:")
                k(f"v_readfirstlane_b32 s9, v{vtag}\ns_nop 1\ns_cmp_lg_u32 s9, 0\ns_cbranch_scc1 {NG_}")
                k(f"s_sleep 4\nbuffer_load_dword v{vtag}, v{t[5]}, s[48:51], 0 offen sc1\ns_waitcnt vmcnt(0)")
                k(f"s_sub_u32 s70, s70, 1\ns_cmp_lg_u32 s70, 0\ns_cbranch_scc1 {NP}")
                k(f"{NG_}:")
                k(f"s_lshl_b32 s68, s6, 7\ns_lshl_b32 s69, s5, 2\ns_add_u32 s68, s68, s69\ns_add_u32 s68, s68, {WS_FL}\nv_mov_b32 v{t[6]}, 0\nv_mov_b32 v{t[7]}, s9")
                k("s_mov_b64 s[10:11], exec\ns_mov_b64 exec, 1")
                k(f"buffer_store_dword v{t[7]}, v{t[6]}, s[44:47], s68 offen sc1")
                k("s_mov_b64 exec, s[10:11]")
                k(f"{F0}:")
            if s_ + 3 <= 9: issueX(s_ + 3)
    TG = k.label("tg")
    k(f"s_cmp_lg_u32 s7, 0\ns_cbranch_scc1 {TG}")
    k(f"v_mov_b32 v{t[6]}, s9\nv_mov_b32 v{t[7]}, 0\nds_write_b32 v{t[7]}, v{t[6]} offset:52224\ns_waitcnt lgkmcnt(0)")
    k(f"{TG}:")
    k("s_barrier")
    k("s_waitcnt vmcnt(0)")
    ga = TR
    for r in range(8):
        k(f"v_mov_b32 v{ga+r}, 0")
        for z in range(5):
            k(f"v_dot2_f32_bf16 v{ga+r}, v{GX+5*r+z}, v{GWD+z}, v{ga+r}")
    for sh in (8, 4, 2, 1):
        k("s_nop 1")
        for r in range(8):
            k(f"v_add_f32_dpp v{ga+r}, v{ga+r}, v{ga+r} row_ror:{sh} row_mask:0xf bank_mask:0xf")
    k("s_nop 1")
    res = TR + 8
    k(f"v_mov_b32 v{res}, 0")
    for r in range(8):
        k(f"v_readlane_b32 s68, v{ga+r}, 0\nv_readlane_b32 s69, v{ga+r}, 16\nv_readlane_b32 s70, v{ga+r}, 32\nv_readlane_b32 s71, v{ga+r}, 48\ns_nop 1")
        k(f"v_mov_b32 v{t[2]}, s68\nv_add_f32 v{t[2]}, s69, v{t[2]}\nv_add_f32 v{t[2]}, s70, v{t[2]}\nv_add_f32 v{t[2]}, s71, v{t[2]}")
        k(f"v_cmp_eq_u32 vcc, {r}, v1\ns_nop 1\nv_cndmask_b32 v{res}, v{res}, v{t[2]}, vcc")
    k(f"v_cvt_pk_bf16_f32 v{res}, v{res}, v{res}\nv_lshlrev_b32 v{res}, 16, v{res}\nv_mul_f32 v{res}, {NLOG2E:#x}, v{res}\nv_exp_f32 v{res}, v{res}\ns_nop 0")
    k(f"v_add_f32 v{res}, 1.0, v{res}\nv_rcp_f32 v{res}, v{res}\ns_nop 0\nv_cvt_pk_bf16_f32 v{res}, v{res}, v{res}\nv_lshlrev_b32 v{res}, 16, v{res}")
    NG = k.label("ng")
    k(f"s_cmp_ge_u32 s6, 8\ns_cbranch_scc1 {NG}")
    k(f"s_lshl_b32 s68, s12, 2\ns_add_u32 s68, s68, {WS_G}\nv_lshlrev_b32 v{t[2]}, 2, v1")
    k("s_mov_b64 s[10:11], exec\ns_mov_b64 exec, 0xff")
    k(f"buffer_store_dword v{res}, v{t[2]}, s[44:47], s68 offen")
    k("s_mov_b64 exec, s[10:11]")
    k(f"{NG}:")
    k(f"s_branch {END}")
    k(f"{AEND}:")
    return max(hiC, R.hi)
```

```python
from common import *

SROW = 288
RS = 9216
UBASE = 8 * RS
RU = 9216
C0 = 0; C1 = 4224
V1OFF = 4576
LDSB = UBASE + 8 * RU

def cmul(dst, x, y, conj_y=False):
    i1 = f"v_pk_mul_f32 v[{dst}:{dst+1}], v[{x}:{x+1}], v[{y}:{y+1}] op_sel:[0,0] op_sel_hi:[1,0]"
    i2 = f"v_pk_fma_f32 v[{dst}:{dst+1}], v[{x}:{x+1}], v[{y}:{y+1}], v[{dst}:{dst+1}] op_sel:[1,1,0] op_sel_hi:[0,1,1] neg_lo:[1,0,0]"
    return [i1, i2]

def interleave(*chains):
    out = []
    idx = [0] * len(chains)
    while any(idx[i] < len(c) for i, c in enumerate(chains)):
        for i, c in enumerate(chains):
            if idx[i] < len(c):
                out.append(c[idx[i]]); idx[i] += 1
    return out

def nib64(vals):
    x = 0
    for i, val in enumerate(vals):
        x |= (val & 15) << (4 * i)
    return x & 0xffffffff, x >> 32

def gen_B(k, dbg=None, stamp=lambda i: None):
    names = ["BAre", "BAim", "BBre", "BBim", "BCre", "BCim"]
    its = [k.srd(8, "x")] + [k.srd(12 + 4*i, n) for i, n in enumerate(names)] + [k.srd(36, "Bldt"), k.srd(40, "ws", size=WS_SIZE)]
    k("s_sub_u32 s44, s2, 160\ns_and_b32 s45, s44, 7\ns_mul_i32 s45, s45, 10\ns_lshr_b32 s44, s44, 3\ns_add_u32 s44, s44, s45")
    k("s_lshl_b32 s45, s44, 3\ns_add_u32 s45, s45, s4")
    R = Regs(2, 256)
    vc = R.get(); vh = R.get()
    k(f"v_and_b32 v{vc}, 15, v1\nv_lshrrev_b32 v{vh}, 4, v1")
    X = R.get(20, 4)
    P = R.get(6)
    vldt = R.get()
    ta = R.get(); tb = R.get(); tc = R.get(); td = R.get()
    k("s_movk_i32 s46, 1280")
    k(f"v_lshlrev_b32 v{ta}, 2, v0\nv_mul_lo_u32 v{ta}, v{ta}, s46")
    k(f"v_subrev_u32 v{tb}, 1280, v{ta}")
    k(f"v_mov_b32 v{tc}, 0x40000000\nv_cmp_eq_u32 vcc, 0, v0\ns_nop 1\nv_cndmask_b32 v{tb}, v{tb}, v{tc}, vcc")
    k(f"v_lshlrev_b32 v{tc}, 2, v1")
    k(f"s_lshl_b32 s47, s44, 4")
    k(f"s_lshl_b32 s48, s45, 8")
    k(f"s_lshl_b32 s49, s45, 1\nv_mov_b32 v{td}, s49")
    k.srd_fin(its)
    for i in range(6):
        k(f"buffer_load_dword v{P+i}, v{tc}, s[{12+4*i}:{15+4*i}], s48 offen")
    k(f"buffer_load_ushort v{vldt}, v{td}, s[36:39], 0 offen")
    k(f"buffer_load_dwordx4 v[{X}:{X+3}], v{tb}, s[8:11], s47 offen")
    for r in range(4):
        k(f"buffer_load_dwordx4 v[{X+4+4*r}:{X+7+4*r}], v{ta}, s[8:11], s47 offen offset:{1280*r}")
    stamp(1)
    k(f"s_mul_i32 s50, s4, {RS}")
    k(f"s_mov_b32 m0, s50")
    def rowmap_addr(dst, vals, rowbase, tmp):
        lo_, hi_ = nib64(vals)
        k(f"v_lshlrev_b32 v{tmp}, 2, v{vc}")
        k(f"s_mov_b32 s52, {lo_:#x}\ns_mov_b32 s53, {hi_:#x}")
        k(f"v_lshrrev_b64 v[{dst}:{dst+1}], v{tmp}, s[52:53]")
        k(f"v_and_b32 v{dst}, 15, v{dst}")
        k(f"v_add_u32 v{dst}, {rowbase}, v{dst}")
        k(f"v_mul_u32_u24 v{dst}, {SROW}, v{dst}")
        k(f"v_lshl_add_u32 v{dst}, v{vh}, 4, v{dst}")
        k(f"v_add_u32 v{dst}, s50, v{dst}")
    aF = R.get(2, 2); aR2 = R.get(2, 2); aR3 = R.get(2, 2); aR4 = R.get(2, 2)
    rowmap_addr(aF, list(range(16)), 0, ta)
    r2 = [2*(i >> 2) + min(i & 3, 2) for i in range(16)]
    rowmap_addr(aR2, r2, 0, ta)
    r3 = [((i >> 2) + (i & 1)) + 5 * ((i >> 1) & 1) for i in range(16)]
    rowmap_addr(aR3, r3, 9, ta)
    ev = [0, 0, 1, 2]; od = [0, 1, 1, 2]
    r4 = [(od if (i & 1) else ev)[i >> 2] + 3 * ((i >> 1) & 1) for i in range(16)]
    rowmap_addr(aR4, r4, 0, ta)
    D = R.get(20, 4)
    for i in range(20):
        k(f"v_mov_b32 v{D+i}, 0")
    vdt = R.get()
    k(f"s_waitcnt vmcnt(5)")
    k(f"v_lshlrev_b32 v{vdt}, 16, v{vldt}\nv_mul_f32 v{vdt}, {LOG2E:#x}, v{vdt}\nv_exp_f32 v{vdt}, v{vdt}\ns_nop 0")
    k(f"v_cvt_pk_bf16_f32 v{vdt}, v{vdt}, v{vdt}\nv_lshlrev_b32 v{vdt}, 16, v{vdt}")
    stamp(2)
    m_k = R.mark()
    W1, W2, W4, W8, W16, W256, W512, W1024, Cc = [R.get(2, 2) for _ in range(9)]
    ea, eb, fa, fb, ga, gb = [R.get(2, 2) for _ in range(6)]
    aL = R.get(); th = R.get(); u0 = R.get(); u1 = R.get(); u2 = R.get(); u3 = R.get()
    q = [R.get() for _ in range(6)]
    pk = [R.get() for _ in range(6)]
    FF = R.get(16, 4)
    AF = R.get(32, 4)

    def direct(dst, e):
        if e == 1:
            k(f"v_exp_f32 v{u0}, v{aL}\nv_fract_f32 v{u1}, v{th}")
        else:
            k(f"v_mul_f32 v{u0}, {f2u(float(e)):#x}, v{aL}\nv_mul_f32 v{u1}, {f2u(float(e)):#x}, v{th}")
            k(f"v_exp_f32 v{u0}, v{u0}\nv_fract_f32 v{u1}, v{u1}")
        k(f"v_cos_f32 v{dst}, v{u1}\nv_sin_f32 v{dst+1}, v{u1}\ns_nop 0")
        k(f"v_mul_f32 v{dst}, v{dst}, v{u0}\nv_mul_f32 v{dst+1}, v{dst+1}, v{u0}")

    pkc = [0, 0, 0]
    def emit(val, row, ch=0):
        t_ = pk[2*ch + (pkc[ch] & 1)]; pkc[ch] += 1
        return [f"v_cvt_pk_bf16_f32 v{t_}, v{val}, v{val+1}", f"ds_write_addtid_b32 v{t_} offset:{row*SROW}"]

    def chain(start, step, n, row0, ra, rb, ch=0):
        ins = []; cur = start
        ins += emit(cur, row0, ch)
        for j in range(1, n):
            nxt = ra if cur != ra else rb
            ins += cmul(nxt, cur, step)
            ins += emit(nxt, row0 + j, ch)
            cur = nxt
        return ins, cur

    def mfma_tile(dreg, aaddr, rowoff, nk=4, abuf=0):
        for ks in range(4):
            k(f"ds_read_b128 v[{AF+abuf+4*ks}:{AF+abuf+4*ks+3}], v{aaddr} offset:{rowoff*SROW + 64*ks}")
    def mfma_do(dreg, abuf):
        for ks in range(4):
            k(f"v_mfma_f32_16x16x32_bf16 v[{dreg}:{dreg+3}], v[{AF+abuf+4*ks}:{AF+abuf+4*ks+3}], v[{FF+4*ks}:{FF+4*ks+3}], v[{dreg}:{dreg+3}]")

    for gam in range(2):
        un = lo16 if gam == 0 else hi16
        for i in range(6):
            un(k, q[i], P + i)
        Ar, Ai, Br, Bi, Cr, Ci = q
        k(f"v_mul_f32 v{aL}, v{vdt}, v{Ar}\nv_mul_f32 v{th}, v{vdt}, v{Ai}")
        k(f"v_mul_f32 v{aL}, {LOG2E:#x}, v{aL}\nv_mul_f32 v{th}, {INV2PI:#x}, v{th}")
        k(f"v_mul_f32 v{Br}, v{vdt}, v{Br}\nv_mul_f32 v{Bi}, v{vdt}, v{Bi}")
        k(f"v_mul_f32 v{Cc}, v{Cr}, v{Br}\nv_mul_f32 v{Cc+1}, v{Cr}, v{Bi}")
        k(f"v_fma_f32 v{Cc}, -v{Ci}, v{Bi}, v{Cc}\nv_fma_f32 v{Cc+1}, v{Ci}, v{Br}, v{Cc+1}")
        direct(W1, 1); direct(W16, 16); direct(W256, 256)
        k(f"v_sub_f32 v{W16+1}, 0, v{W16+1}")
        k(f"v_mov_b32 v{pk[0]}, 0x3f80\nds_write_addtid_b32 v{pk[0]} offset:0")
        pkc[0] = 1
        cF, _ = chain(W16, W16, 15, 1, fa, fb, 0)
        cT, _ = chain(Cc, W1, 16, 16, ea, eb, 1)
        misc = cmul(W2, W1, W1) + cmul(W4, W2, W2) + cmul(W8, W4, W4) + cmul(W512, W256, W256) + cmul(W1024, W512, W512)
        for ins in interleave(cF, cT, misc): k(ins)
        k("s_waitcnt lgkmcnt(0)")
        for ks in range(4):
            k(f"ds_read_b128 v[{FF+4*ks}:{FF+4*ks+3}], v{aF} offset:{64*ks}")
        mfma_tile(D, aF, 16, abuf=0)
        k("s_waitcnt lgkmcnt(0)")
        mfma_do(D, 0)
        pre = cmul(ga, Cc, W256) + cmul(ea, Cc, W512)
        for ins in pre: k(ins)
        post = cmul(fa, ea, W256)
        for ins in post: k(ins)
        c2, _ = chain(ga, W2, 9, 0, gb, W16, 0)
        c3a, _ = chain(ea, W4, 5, 9, eb, W1, 1)
        c3b, _ = chain(fa, W4, 5, 14, fb, W512, 2)
        for ins in interleave(c2, c3a, c3b): k(ins)
        k("s_waitcnt lgkmcnt(0)")
        mfma_tile(D+4, aR2, 0, abuf=0)
        mfma_tile(D+8, aR3, 0, abuf=16)
        for ins in cmul(ea, Cc, W1024): k(ins)
        for ins in cmul(eb, ea, W8): k(ins)
        for ins in cmul(fa, eb, W8): k(ins)
        k("s_waitcnt lgkmcnt(0)")
        mfma_do(D+4, 0); mfma_do(D+8, 16)
        chains = []
        for (st, ra, rb) in ((ea, ga, W1), (eb, gb, W2), (fa, fb, W4)):
            ins = []; cur = st
            col = {ea: 0, eb: 1, fa: 2}[st]
            ins += emit(cur, col, col)
            for T in range(1, 4):
                nxt = ra if cur != ra else rb
                ins += cmul(nxt, cur, W256)
                ins += emit(nxt, 3*T + col, col)
                cur = nxt
            chains.append(ins)
        for ins in interleave(*chains): k(ins)
        k("s_waitcnt lgkmcnt(0)")
        mfma_tile(D+12, aR4, 0, abuf=0)
        mfma_tile(D+16, aR4, 6, abuf=16)
        k("s_waitcnt lgkmcnt(0)")
        mfma_do(D+12, 0); mfma_do(D+16, 16)
    stamp(3)
    k("s_waitcnt vmcnt(0)")
    ua = u0
    k(f"v_sub_u32 v{ua}, 511, v0\nv_lshlrev_b32 v{ua}, 3, v{ua}\nv_add_u32 v{ua}, {UBASE}, v{ua}")
    ub = q[0]
    k(f"v_add_u32 v{ub}, {4*RU}, v{ua}")
    k("s_mov_b32 s54, 0x05040100\ns_mov_b32 s55, 0x07060302")
    pr = [ea, eb, fa, fb]
    n_ = 0
    for e in range(4):
        for half in range(2):
            ch = 2*e + half; sel = "s54" if half == 0 else "s55"
            r_m1, r0, r1, r2_, r3_ = X+e, X+4+e, X+8+e, X+12+e, X+16+e
            a_ = pr[n_ % 4]; b_ = pr[(n_+1) % 4]; n_ += 2
            k(f"v_perm_b32 v{a_}, v{r2_}, v{r3_}, {sel}\nv_perm_b32 v{a_+1}, v{r0}, v{r1}, {sel}")
            ux = ua if ch < 4 else ub
            k(f"ds_write_b64 v{ux}, v[{a_}:{a_+1}] offset:{(ch%4)*RU + V1OFF}")
            k(f"v_perm_b32 v{b_}, v{r1}, v{r2_}, {sel}\nv_perm_b32 v{b_+1}, v{r_m1}, v{r0}, {sel}")
            k(f"ds_write_b64 v{ux}, v[{b_}:{b_+1}] offset:{(ch%4)*RU}")
    k(f"s_mul_i32 s51, s4, {RU}\ns_add_u32 s51, s51, {UBASE}")
    k(f"v_mov_b32 v{ga}, 0\nv_mov_b32 v{ga+1}, 0")
    k(f"v_lshlrev_b32 v{u1}, 3, v1\nv_add_u32 v{u1}, s51, v{u1}")
    k("v_cmp_gt_u32 vcc, 56, v1\ns_and_saveexec_b64 s[56:57], vcc")
    k(f"ds_write_b64 v{u1}, v[{ga}:{ga+1}] offset:4096\nds_write_b64 v{u1}, v[{ga}:{ga+1}] offset:{V1OFF+4096}")
    k("s_mov_b64 exec, s[56:57]")
    wa = u2
    k(f"v_lshlrev_b32 v{wa}, 5, v{vc}\nv_lshl_add_u32 v{wa}, v{vh}, 3, v{wa}\nv_add_u32 v{wa}, s50, v{wa}")
    k(f"v_and_b32 v{u3}, 1, v{vh}\nv_cmp_eq_u32 vcc, 1, v{u3}")
    def put(T, d0, d1):
        k(f"ds_write_b32 v{wa}, v{d0} offset:{C0 + 512*T + 60}\nds_write_b32 v{wa}, v{d1} offset:{C0 + 512*T + 64}")
        k(f"ds_write2_b32 v{wa}, v{d0}, v{d1} offset0:0 offset1:1" if False else f"ds_write_b64 v{wa}, v[{d0}:{d1}] offset:{C1 + 512*T + 56}")
    prs = [ea, eb, fa, fb, gb, W1, W2, W4]
    def pair(T): return prs[T]
    z = pair(0); k(f"v_cvt_pk_bf16_f32 v{z}, v{D}, v{D+1}\nv_cvt_pk_bf16_f32 v{z+1}, v{D+2}, v{D+3}"); put(0, z, z+1)
    z = pair(1); k(f"v_cvt_pk_bf16_f32 v{z}, v{D+4}, v{D+4}\nv_cvt_pk_bf16_f32 v{z+1}, v{D+5}, v{D+6}"); put(1, z, z+1)
    for T, (a_, b_) in ((2, (D+8, D+9)), (3, (D+10, D+11))):
        z = pair(T)
        k(f"v_cndmask_b32 v{u3}, v{a_}, v{b_}, vcc")
        k(f"v_cvt_pk_bf16_f32 v{z}, v{a_}, v{a_}\nv_cvt_pk_bf16_f32 v{z+1}, v{u3}, v{b_}"); put(T, z, z+1)
    for T, (a_, b_) in ((4, (D+12, D+13)), (5, (D+14, D+15)), (6, (D+16, D+17)), (7, (D+18, D+19))):
        z = pair(T)
        k(f"v_cvt_pk_bf16_f32 v{z}, v{a_}, v{b_}\nv_cvt_pk_bf16_f32 v{z+1}, v{b_}, v{b_}"); put(T, z, z+1)
    k(f"v_lshlrev_b32 v{u1}, 2, v1\nv_add_u32 v{u1}, s50, v{u1}")
    k("v_cmp_gt_u32 vcc, 15, v1\ns_and_saveexec_b64 s[56:57], vcc")
    k(f"ds_write_b32 v{u1}, v{ga} offset:{C0}")
    k("v_cmp_gt_u32 vcc, 14, v1\ns_and_b64 exec, exec, vcc")
    k(f"ds_write_b32 v{u1}, v{ga} offset:{C1}")
    k("s_mov_b64 exec, s[56:57]")
    k("s_waitcnt lgkmcnt(0)")
    k("s_barrier")
    stamp(4)
    R.release(m_k)
    DD = R.get(32, 4)
    A0 = R.get(32, 4); B0 = R.get(32, 4); A1 = R.get(32, 4); B1 = R.get(32, 4)
    va = R.get(); vb = R.get(); tq = R.get(); tr = R.get()
    k(f"v_and_b32 v{tq}, 1, v{vc}\nv_mul_u32_u24 v{tq}, {C1-4}, v{tq}\nv_lshl_add_u32 v{tq}, v{vc}, 2, v{tq}\nv_lshl_add_u32 v{tq}, v{vh}, 4, v{tq}")
    k(f"v_add_u32 v{va}, s50, v{tq}")
    k(f"v_and_b32 v{tq}, 1, v{vc}\nv_mul_u32_u24 v{tq}, {V1OFF}, v{tq}\nv_lshrrev_b32 v{tr}, 1, v{vc}\nv_lshlrev_b32 v{tr}, 6, v{tr}\nv_sub_u32 v{tq}, v{tq}, v{tr}")
    k(f"v_lshl_add_u32 v{tq}, v{vh}, 4, v{tq}\nv_add_u32 v{tq}, {4032 - 3584}, v{tq}\nv_add_u32 v{vb}, s51, v{tq}")
    for i in range(32):
        k(f"v_mov_b32 v{DD+i}, 0")
    def creads(A, B, kp):
        for m in range(8):
            off = 64*kp + 512*m
            k(f"ds_read_b64 v[{A+4*m}:{A+4*m+1}], v{va} offset:{off}\nds_read_b64 v[{A+4*m+2}:{A+4*m+3}], v{va} offset:{off+8}")
        for nu in range(8):
            k(f"ds_read_b128 v[{B+4*nu}:{B+4*nu+3}], v{vb} offset:{64*kp + 512*(7-nu)}")
    def cm(A, B):
        for m in range(8):
            for n in range(m, 8):
                k(f"v_mfma_f32_16x16x32_bf16 v[{DD+4*n}:{DD+4*n+3}], v[{A+4*m}:{A+4*m+3}], v[{B+4*(n-m)}:{B+4*(n-m)+3}], v[{DD+4*n}:{DD+4*n+3}]")
    bufs = [(A0, B0), (A1, B1)]
    creads(A0, B0, 0)
    for kp in range(8):
        k("s_waitcnt lgkmcnt(0)")
        if kp + 1 < 8:
            creads(*bufs[(kp+1) & 1], kp + 1)
        cm(*bufs[kp & 1])
    stamp(5)
    k("s_nop 7\ns_nop 1")
    k(f"v_lshrrev_b32 v{tq}, 1, v{vc}\nv_lshlrev_b32 v{tq}, 6, v{tq}\nv_lshl_add_u32 v{tq}, v{vh}, 4, v{tq}")
    k(f"s_lshl_b32 s58, s45, 12\ns_add_u32 s58, s58, {WS_YB}")
    k(f"v_and_b32 v{tr}, 1, v{vc}\nv_cmp_eq_u32 vcc, 0, v{tr}\ns_and_saveexec_b64 s[56:57], vcc") if False else None
    for n in range(8):
        o = A0 + 4*n
        for r in range(4):
            k(f"v_mov_b32_dpp v{A1+r}, v{DD+4*n+r} quad_perm:[1,0,3,2] row_mask:0xf bank_mask:0xf")
        k("s_nop 0")
        for r in range(4):
            k(f"v_cvt_pk_bf16_f32 v{o+r}, v{DD+4*n+r}, v{A1+r}")
    k(f"v_and_b32 v{tr}, 1, v{vc}\nv_cmp_eq_u32 vcc, 0, v{tr}\ns_and_saveexec_b64 s[56:57], vcc")
    for n in range(8):
        o = A0 + 4*n
        k(f"buffer_store_dwordx4 v[{o}:{o+3}], v{tq}, s[40:43], s58 offen offset:{512*n}")
    k("s_mov_b64 exec, s[56:57]")
    return R.hi

if __name__ == "__main__":
    import sys
    k = Kern("kb_kernel", 240, 512, lds=LDSB, vgpr=256, sgpr=96)
    END = k.name + "_end"
    def stamp(i):
        k(f"s_memtime s[{64+2*i}:{65+2*i}]\ns_waitcnt lgkmcnt(0)")
    k(f"s_cmp_ge_u32 s2, 240\ns_cbranch_scc1 {END}")
    k(f"s_cmp_lt_u32 s2, 160\ns_cbranch_scc1 {END}")
    k("s_memtime s[64:65]")
    k("s_load_dwordx2 s[60:61], s[0:1], 160")
    wave_id(k, 4, 1)
    k("v_and_b32 v1, 63, v0")
    hi = gen_B(k, stamp=stamp)
    print("B vgprs", hi)
    k("s_waitcnt vmcnt(0)")
    stamp(6)
    k("s_mov_b32 s62, 256\ns_mov_b32 s63, 0x20000")
    k(f"s_cmp_ge_u32 s2, 164\ns_cbranch_scc1 {END}")
    k(f"s_cmp_lg_u32 s4, 0\ns_cbranch_scc1 {END}")
    k("v_cmp_eq_u32 vcc, 0, v1\ns_and_saveexec_b64 s[50:51], vcc")
    k(f"s_cbranch_execz {END}")
    k("s_sub_u32 s59, s2, 160\ns_lshl_b32 s59, s59, 5\nv_mov_b32 v3, s59")
    for i in range(1, 7):
        k(f"s_sub_u32 s58, s{64+2*i}, s64\nv_mov_b32 v2, s58\nbuffer_store_dword v2, v3, s[60:63], 0 offen offset:{4*i}")
    k(f"{END}:\ns_endpgm")
    build([k], [k], sys.argv[1])
```

```python
from common import *
from kb import cmul, interleave, nib64

SROW = 288
SW = 9600
EX = 4224
UB = 4 * SW
RU = 9216
V1OFF = 4576
LDSB2 = UB + 2 * RU

def gen_B3(k, stamp, store_flags=""):
    k("s_load_dwordx16 s[8:23], s[0:1], 80\ns_load_dwordx4 s[24:27], s[0:1], 160")
    k("s_sub_u32 s5, s2, 160\ns_lshl_b32 s5, s5, 1\ns_lshr_b32 s6, s4, 1\ns_add_u32 s5, s5, s6")
    k("s_and_b32 s7, s4, 1")
    R = Regs(2, 168)
    vc = R.get(); vh = R.get()
    P = R.get(6); vldt = R.get()
    ta = R.get(); tb = R.get(); tc = R.get(); td = R.get()
    k(f"v_and_b32 v{vc}, 15, v1\nv_lshrrev_b32 v{vh}, 4, v1")
    k(f"v_lshlrev_b32 v{tc}, 2, v1")
    k(f"s_lshl_b32 s60, s5, 8\ns_lshl_b32 s61, s5, 1\nv_mov_b32 v{td}, s61")
    k("s_waitcnt lgkmcnt(0)")
    for i in range(6): mk_srd(k, 28 + 4*i, 8 + 2*i, SIZE["BAre"])
    mk_srd(k, 52, 20, 1280); mk_srd(k, 56, 26, WS_SIZE2); mk_srd(k, 64, 24, 256)
    k(f"s_mul_i32 s62, s4, {SW}")
    for i in range(6):
        k(f"buffer_load_dword v{P+i}, v{tc}, s[{28+4*i}:{31+4*i}], s60 offen")
    k(f"buffer_load_ushort v{vldt}, v{td}, s[52:55], 0 offen")
    stamp(1)
    k("s_mov_b32 m0, s62")
    def rowmap_addr(dst, vals, rowbase, tmp):
        lo_, hi_ = nib64(vals)
        k(f"v_lshlrev_b32 v{tmp}, 2, v{vc}")
        k(f"s_mov_b32 s68, {lo_:#x}\ns_mov_b32 s69, {hi_:#x}")
        k(f"v_lshrrev_b64 v[{dst}:{dst+1}], v{tmp}, s[68:69]")
        k(f"v_and_b32 v{dst}, 15, v{dst}")
        k(f"v_add_u32 v{dst}, {rowbase}, v{dst}")
        k(f"v_mul_u32_u24 v{dst}, {SROW}, v{dst}")
        k(f"v_lshl_add_u32 v{dst}, v{vh}, 4, v{dst}")
        k(f"v_add_u32 v{dst}, s62, v{dst}")
    aF = R.get(2, 2); aR2 = R.get(2, 2); aR3 = R.get(2, 2); aR4 = R.get(2, 2)
    rowmap_addr(aF, list(range(16)), 0, ta)
    rowmap_addr(aR2, [2*(i >> 2) + min(i & 3, 2) for i in range(16)], 0, ta)
    rowmap_addr(aR3, [((i >> 2) + (i & 1)) + 5 * ((i >> 1) & 1) for i in range(16)], 9, ta)
    ev = [0, 0, 1, 2]; od = [0, 1, 1, 2]
    rowmap_addr(aR4, [(od if (i & 1) else ev)[i >> 2] + 3 * ((i >> 1) & 1) for i in range(16)], 0, ta)
    D = R.get(20, 4)
    XU = R.get(10, 4)
    for i in range(20):
        k(f"v_mov_b32 v{D+i}, 0")
    vdt = R.get()
    k("s_waitcnt vmcnt(0)")
    k(f"v_lshlrev_b32 v{vdt}, 16, v{vldt}\nv_mul_f32 v{vdt}, {LOG2E:#x}, v{vdt}\nv_exp_f32 v{vdt}, v{vdt}\ns_nop 0")
    k(f"v_cvt_pk_bf16_f32 v{vdt}, v{vdt}, v{vdt}\nv_lshlrev_b32 v{vdt}, 16, v{vdt}")
    stamp(2)
    m_k = R.mark()
    W1, W2, W4, W8, W16, W256, W512, W1024, Cc = [R.get(2, 2) for _ in range(9)]
    ea, eb, fa, fb, ga, gb = [R.get(2, 2) for _ in range(6)]
    aL = R.get(); th = R.get(); u0 = R.get(); u1 = R.get(); u2 = R.get(); u3 = R.get()
    q = [R.get() for _ in range(6)]
    pk = [R.get() for _ in range(6)]
    FF = R.get(16, 4); AF = R.get(32, 4)

    def direct(dst, e):
        if e == 1:
            k(f"v_exp_f32 v{u0}, v{aL}\nv_fract_f32 v{u1}, v{th}")
        else:
            k(f"v_mul_f32 v{u0}, {f2u(float(e)):#x}, v{aL}\nv_mul_f32 v{u1}, {f2u(float(e)):#x}, v{th}")
            k(f"v_exp_f32 v{u0}, v{u0}\nv_fract_f32 v{u1}, v{u1}")
        k(f"v_cos_f32 v{dst}, v{u1}\nv_sin_f32 v{dst+1}, v{u1}\ns_nop 0")
        k(f"v_mul_f32 v{dst}, v{dst}, v{u0}\nv_mul_f32 v{dst+1}, v{dst+1}, v{u0}")
    pkc = [0, 0, 0]
    def emit(val, row, ch=0):
        t_ = pk[2*ch + (pkc[ch] & 1)]; pkc[ch] += 1
        return [f"v_cvt_pk_bf16_f32 v{t_}, v{val}, v{val+1}", f"ds_write_addtid_b32 v{t_} offset:{row*SROW}"]
    def chain(start, step, n, row0, ra, rb, ch=0):
        ins = []; cur = start
        ins += emit(cur, row0, ch)
        for j in range(1, n):
            nxt = ra if cur != ra else rb
            ins += cmul(nxt, cur, step)
            ins += emit(nxt, row0 + j, ch)
            cur = nxt
        return ins, cur
    def mfma_tile(aaddr, rowoff, abuf):
        for ks in range(4):
            k(f"ds_read_b128 v[{AF+abuf+4*ks}:{AF+abuf+4*ks+3}], v{aaddr} offset:{rowoff*SROW + 64*ks}")
    def mfma_do(dreg, abuf):
        for ks in range(4):
            k(f"v_mfma_f32_16x16x32_bf16 v[{dreg}:{dreg+3}], v[{AF+abuf+4*ks}:{AF+abuf+4*ks+3}], v[{FF+4*ks}:{FF+4*ks+3}], v[{dreg}:{dreg+3}]")

    k("s_lshl_b32 s68, s7, 4\ns_sub_u32 s68, 16, s68")
    for i in range(6):
        k(f"v_lshlrev_b32 v{q[i]}, s68, v{P+i}\nv_and_b32 v{q[i]}, {MASKHI}, v{q[i]}")
    Ar, Ai, Br, Bi, Cr, Ci = q
    k(f"v_mul_f32 v{aL}, v{vdt}, v{Ar}\nv_mul_f32 v{th}, v{vdt}, v{Ai}")
    k(f"v_mul_f32 v{aL}, {LOG2E:#x}, v{aL}\nv_mul_f32 v{th}, {INV2PI:#x}, v{th}")
    k(f"v_mul_f32 v{Br}, v{vdt}, v{Br}\nv_mul_f32 v{Bi}, v{vdt}, v{Bi}")
    k(f"v_mul_f32 v{Cc}, v{Cr}, v{Br}\nv_mul_f32 v{Cc+1}, v{Cr}, v{Bi}")
    k(f"v_fma_f32 v{Cc}, -v{Ci}, v{Bi}, v{Cc}\nv_fma_f32 v{Cc+1}, v{Ci}, v{Br}, v{Cc+1}")
    direct(W1, 1); direct(W16, 16); direct(W256, 256)
    k(f"v_sub_f32 v{W16+1}, 0, v{W16+1}")
    k(f"v_mov_b32 v{pk[0]}, 0x3f80\nds_write_addtid_b32 v{pk[0]} offset:0")
    pkc[0] = 1
    cF, _ = chain(W16, W16, 15, 1, fa, fb, 0)
    cT, _ = chain(Cc, W1, 16, 16, ea, eb, 1)
    misc = cmul(W2, W1, W1) + cmul(W4, W2, W2) + cmul(W8, W4, W4) + cmul(W512, W256, W256) + cmul(W1024, W512, W512)
    for ins in interleave(cF, cT, misc): k(ins)
    k("s_waitcnt lgkmcnt(0)")
    for ks in range(4):
        k(f"ds_read_b128 v[{FF+4*ks}:{FF+4*ks+3}], v{aF} offset:{64*ks}")
    mfma_tile(aF, 16, 0)
    for ins in cmul(ga, Cc, W256) + cmul(ea, Cc, W512) + cmul(fa, ea, W256): k(ins)
    k("s_waitcnt lgkmcnt(0)")
    mfma_do(D, 0)
    c2, _ = chain(ga, W2, 9, 0, gb, W16, 0)
    c3a, _ = chain(ea, W4, 5, 9, eb, W1, 1)
    c3b, _ = chain(fa, W4, 5, 14, fb, W512, 2)
    for ins in interleave(c2, c3a, c3b): k(ins)
    k("s_waitcnt lgkmcnt(0)")
    mfma_tile(aR2, 0, 0)
    mfma_tile(aR3, 0, 16)
    for ins in cmul(ea, Cc, W1024) + cmul(eb, ea, W8) + cmul(fa, eb, W8): k(ins)
    stamp(3)
    stamp(4)
    k("s_waitcnt lgkmcnt(0)")
    mfma_do(D+4, 0); mfma_do(D+8, 16)
    chains = []
    for (st, ra, rb, col) in ((ea, ga, W1, 0), (eb, gb, W2, 1), (fa, fb, W4, 2)):
        ins = []; cur = st
        ins += emit(cur, col, col)
        for T in range(1, 4):
            nxt = ra if cur != ra else rb
            ins += cmul(nxt, cur, W256)
            ins += emit(nxt, 3*T + col, col)
            cur = nxt
        chains.append(ins)
    for ins in interleave(*chains): k(ins)
    k("s_waitcnt lgkmcnt(0)")
    mfma_tile(aR4, 0, 0)
    mfma_tile(aR4, 6, 16)
    k("s_waitcnt lgkmcnt(0)")
    mfma_do(D+12, 0); mfma_do(D+16, 16)
    GOT = k.label("bgot"); POLL = k.label("bpoll")
    k(f"s_cmp_lg_u32 s4, 0\ns_cbranch_scc1 {GOT}")
    k(f"s_lshr_b32 s68, s5, 6\ns_lshl_b32 s69, s68, 2\nv_mov_b32 v{u0}, s69")
    k(f"s_lshl_b32 s68, s68, 7\ns_add_u32 s68, s68, {WS_FL}\nv_lshlrev_b32 v{u1}, 2, v{vc}")
    k("s_mov_b32 s69, 0x40000")
    k(f"{POLL}:")
    k(f"buffer_load_dword v{XU}, v{u0}, s[64:67], 0 offen sc1\nbuffer_load_dword v{XU+1}, v{u1}, s[56:59], s68 offen sc1\ns_waitcnt vmcnt(0)")
    k(f"v_cmp_eq_u32 s[70:71], v{XU}, v{XU+1}\nv_cmp_ne_u32 vcc, 0, v{XU}\ns_and_b64 s[70:71], s[70:71], vcc")
    k(f"s_cmp_eq_u64 s[70:71], -1\ns_cbranch_scc1 {POLL}_d")
    k(f"s_sleep 8\ns_sub_u32 s69, s69, 1\ns_cmp_lg_u32 s69, 0\ns_cbranch_scc1 {POLL}")
    k(f"{POLL}_d:")
    k(f"{GOT}:")
    k("s_barrier")
    k(f"s_lshl_b32 s68, s5, 12\ns_lshl_b32 s69, s7, 11\ns_add_u32 s68, s68, s69\ns_add_u32 s68, s68, {WS_XR}")
    k(f"v_lshlrev_b32 v{u0}, 4, v1")
    k(f"buffer_load_dwordx4 v[{XU}:{XU+3}], v{u0}, s[56:59], s68 offen sc1\nbuffer_load_dwordx4 v[{XU+4}:{XU+7}], v{u0}, s[56:59], s68 offen offset:1024 sc1")
    k(f"buffer_load_dword v{XU+8}, v{u0}, s[56:59], s68 offen offset:16 sc1\nbuffer_load_dword v{XU+9}, v{u0}, s[56:59], s68 offen offset:1040 sc1")
    exw = u0; exr = u1
    k(f"v_lshl_add_u32 v{exw}, v1, 4, s62")
    k(f"s_xor_b32 s68, s4, 1\ns_mul_i32 s68, s68, {SW}\nv_lshl_add_u32 v{exr}, v1, 4, s68")
    k(f"s_mul_i32 s63, s6, {RU}\ns_add_u32 s63, s63, {UB}")
    k("s_waitcnt vmcnt(0)")
    k(f"s_cmp_eq_u32 s7, 1\ns_cselect_b32 s68, 63, 64\nv_cmp_eq_u32 vcc, s68, v1\ns_nop 1\nv_cndmask_b32 v{XU+9}, v{XU+9}, 0, vcc" if False else
      f"s_cmp_eq_u32 s7, 1\ns_cselect_b32 s68, 63, 64\nv_mov_b32 v{u2}, 0\nv_cmp_eq_u32 vcc, s68, v1\ns_nop 1\nv_cndmask_b32 v{XU+9}, v{XU+9}, v{u2}, vcc")
    ua = u2
    k(f"s_lshl_b32 s68, s7, 11\ns_add_u32 s68, s68, s63\nv_lshl_add_u32 v{ua}, v1, 4, s68")
    for i in range(2):
        x = XU + 4*i; e = XU + 8 + i
        k(f"ds_write_b128 v{ua}, v[{x}:{x+3}] offset:{V1OFF + 1024*i}")
        o = AF + 4*i
        k(f"v_alignbyte_b32 v{o}, v{x+1}, v{x}, 2\nv_alignbyte_b32 v{o+1}, v{x+2}, v{x+1}, 2\nv_alignbyte_b32 v{o+2}, v{x+3}, v{x+2}, 2\nv_alignbyte_b32 v{o+3}, v{e}, v{x+3}, 2")
        k(f"ds_write_b128 v{ua}, v[{o}:{o+3}] offset:{1024*i}")
    k(f"v_mov_b32 v{ga}, 0\nv_mov_b32 v{ga+1}, 0")
    k(f"s_mul_i32 s68, s7, {V1OFF}\ns_add_u32 s68, s68, s63\nv_lshl_add_u32 v{u3}, v1, 3, s68")
    k("v_cmp_gt_u32 vcc, 56, v1\ns_and_saveexec_b64 s[70:71], vcc")
    k(f"ds_write_b64 v{u3}, v[{ga}:{ga+1}] offset:4096")
    k("s_mov_b64 exec, s[70:71]")
    for tl in range(5):
        k(f"ds_write_b128 v{exw}, v[{D+4*tl}:{D+4*tl+3}] offset:{EX + 1024*tl}")
    k("s_waitcnt lgkmcnt(0)")
    k("s_barrier")
    stamp(5)
    for tl in range(5):
        k(f"ds_read_b128 v[{AF+4*tl}:{AF+4*tl+3}], v{exr} offset:{EX + 1024*tl}")
    wa = u2
    k(f"v_lshlrev_b32 v{wa}, 5, v{vc}\nv_lshl_add_u32 v{wa}, v{vh}, 3, v{wa}\nv_add_u32 v{wa}, s62, v{wa}")
    k(f"v_and_b32 v{u3}, 1, v{vh}\nv_cmp_eq_u32 vcc, 1, v{u3}")
    k("s_waitcnt lgkmcnt(0)")
    for i in range(20):
        k(f"v_add_f32 v{D+i}, v{D+i}, v{AF+i}")
    Z = FF
    k(f"v_cvt_pk_bf16_f32 v{Z}, v{D}, v{D+1}\nv_cvt_pk_bf16_f32 v{Z+1}, v{D+2}, v{D+3}")
    k(f"v_cvt_pk_bf16_f32 v{Z+2}, v{D+4}, v{D+4}\nv_cvt_pk_bf16_f32 v{Z+3}, v{D+5}, v{D+6}")
    for T, (a_, b_) in ((2, (D+8, D+9)), (3, (D+10, D+11))):
        k(f"v_cndmask_b32 v{u3}, v{a_}, v{b_}, vcc")
        k(f"v_cvt_pk_bf16_f32 v{Z+2*T}, v{a_}, v{a_}\nv_cvt_pk_bf16_f32 v{Z+2*T+1}, v{u3}, v{b_}")
    for T, (a_, b_) in ((4, (D+12, D+13)), (5, (D+14, D+15)), (6, (D+16, D+17)), (7, (D+18, D+19))):
        k(f"v_cvt_pk_bf16_f32 v{Z+2*T}, v{a_}, v{b_}\nv_cvt_pk_bf16_f32 v{Z+2*T+1}, v{b_}, v{b_}")
    G1 = k.label("g1"); GE = k.label("ge")
    k(f"v_lshl_add_u32 v{u1}, v1, 2, s62")
    k(f"s_cmp_eq_u32 s7, 1\ns_cbranch_scc1 {G1}")
    for T in range(8):
        k(f"ds_write_b32 v{wa}, v{Z+2*T} offset:{512*T + 60}\nds_write_b32 v{wa}, v{Z+2*T+1} offset:{512*T + 64}")
    k("v_cmp_gt_u32 vcc, 15, v1\ns_and_saveexec_b64 s[70:71], vcc")
    k(f"ds_write_b32 v{u1}, v{ga}")
    k("s_mov_b64 exec, s[70:71]")
    k(f"s_branch {GE}")
    k(f"{G1}:")
    for T in range(8):
        k(f"ds_write_b64 v{wa}, v[{Z+2*T}:{Z+2*T+1}] offset:{512*T + 56}")
    k("v_cmp_gt_u32 vcc, 14, v1\ns_and_saveexec_b64 s[70:71], vcc")
    k(f"ds_write_b32 v{u1}, v{ga}")
    k("s_mov_b64 exec, s[70:71]")
    k(f"{GE}:")
    k("s_waitcnt lgkmcnt(0)")
    k("s_barrier")
    stamp(6)
    R.release(m_k)
    DD = R.get(32, 4)
    A0 = R.get(32, 4); B0 = R.get(32, 4); A1 = R.get(4, 4)
    va = R.get(); vb = R.get(); tq = R.get(); tr = R.get()
    k(f"v_and_b32 v{tq}, 1, v{vc}\nv_mul_u32_u24 v{tq}, {SW-4}, v{tq}\nv_lshl_add_u32 v{tq}, v{vc}, 2, v{tq}\nv_lshl_add_u32 v{tq}, v{vh}, 4, v{tq}")
    k(f"s_mul_i32 s68, s6, {2*SW}\ns_lshl_b32 s69, s7, 8\ns_add_u32 s68, s68, s69\nv_add_u32 v{va}, s68, v{tq}")
    k(f"v_and_b32 v{tq}, 1, v{vc}\nv_mul_u32_u24 v{tq}, {V1OFF}, v{tq}\nv_lshrrev_b32 v{tr}, 1, v{vc}\nv_lshlrev_b32 v{tr}, 6, v{tr}\nv_sub_u32 v{tq}, v{tq}, v{tr}")
    k(f"v_lshl_add_u32 v{tq}, v{vh}, 4, v{tq}\nv_add_u32 v{tq}, {4032 - 3584}, v{tq}\ns_add_u32 s68, s63, s69\nv_add_u32 v{vb}, s68, v{tq}")
    LT = LdsTrack(k)
    def ldA(m, kp):
        off = 64*kp + 512*m
        LT.issue(f"ds_read_b64 v[{A0+4*m}:{A0+4*m+1}], v{va} offset:{off}", ("A", m))
        LT.issue(f"ds_read_b64 v[{A0+4*m+2}:{A0+4*m+3}], v{va} offset:{off+8}", ("A", m))
    def ldB(nu, kp):
        LT.issue(f"ds_read_b128 v[{B0+4*nu}:{B0+4*nu+3}], v{vb} offset:{64*kp + 512*(7-nu)}", ("B", nu))
    for m in range(8):
        ldB(7 - m, 0); ldA(m, 0)
    for i in range(32):
        k(f"v_mov_b32 v{DD+i}, 0")
    for kp in range(4):
        nxt = kp + 1 if kp + 1 < 4 else None
        pendA = {}
        for m in range(8):
            for n in range(7, m - 1, -1):
                LT.need(("A", m), ("B", n - m)) if (m == 0 or n == 7) else None
                k(f"v_mfma_f32_16x16x32_bf16 v[{DD+4*n}:{DD+4*n+3}], v[{A0+4*m}:{A0+4*m+3}], v[{B0+4*(n-m)}:{B0+4*(n-m)+3}], v[{DD+4*n}:{DD+4*n+3}]")
                if n == 7 and nxt is not None: ldB(7 - m, nxt)
            if nxt is not None: ldA(m, nxt)
    stamp(7)
    k(f"v_lshl_add_u32 v{tq}, v1, 4, s62")
    k(f"s_xor_b32 s68, s4, 1\ns_mul_i32 s68, s68, {SW}\nv_lshl_add_u32 v{tr}, v1, 4, s68")
    S1 = k.label("s1"); SE = k.label("se")
    k("s_nop 7")
    k(f"s_cmp_eq_u32 s7, 1\ns_cbranch_scc1 {S1}")
    for n in range(4):
        k(f"ds_write_b128 v{tq}, v[{DD+16+4*n}:{DD+16+4*n+3}] offset:{EX + 1024*n}")
    k(f"s_branch {SE}")
    k(f"{S1}:")
    for n in range(4):
        k(f"ds_write_b128 v{tq}, v[{DD+4*n}:{DD+4*n+3}] offset:{EX + 1024*n}")
    for i in range(16):
        k(f"v_mov_b32 v{DD+i}, v{DD+16+i}")
    k(f"{SE}:")
    k("s_waitcnt lgkmcnt(0)")
    k("s_barrier")
    for n in range(4):
        k(f"ds_read_b128 v[{B0+4*n}:{B0+4*n+3}], v{tr} offset:{EX + 1024*n}")
    k(f"v_lshrrev_b32 v{tq}, 1, v{vc}\nv_lshlrev_b32 v{tq}, 6, v{tq}\nv_lshl_add_u32 v{tq}, v{vh}, 4, v{tq}")
    k(f"s_lshl_b32 s68, s5, 12\ns_lshl_b32 s69, s7, 11\ns_add_u32 s68, s68, s69\ns_add_u32 s68, s68, {WS_YB}")
    k("s_waitcnt lgkmcnt(0)")
    for i in range(16):
        k(f"v_add_f32 v{DD+i}, v{DD+i}, v{B0+i}")
    for n in range(4):
        o = A0 + 4*n
        k("s_nop 1")
        for r in range(4):
            k(f"v_mov_b32_dpp v{A1+r}, v{DD+4*n+r} quad_perm:[1,0,3,2] row_mask:0xf bank_mask:0xf")
        for r in range(4):
            k(f"v_cvt_pk_bf16_f32 v{o+r}, v{DD+4*n+r}, v{A1+r}")
    k(f"v_and_b32 v{tr}, 1, v{vc}\nv_cmp_eq_u32 vcc, 0, v{tr}\ns_and_saveexec_b64 s[70:71], vcc")
    for n in range(4):
        o = A0 + 4*n
        k(f"buffer_store_dwordx4 v[{o}:{o+3}], v{tq}, s[56:59], s68 offen offset:{512*n} {store_flags}")
    k("s_mov_b64 exec, s[70:71]")
    stamp(8)
    return R.hi
```

```python
import sys
from common import *
from ka3 import gen_A3
from kb3 import gen_B3
import k2 as k2mod

def gen_k1(dbg=False, store_flags="", noB=False):
    k = Kern("k1_kernel", 480, 384, lds=81920, vgpr=168, sgpr=100)
    END = k.name + "_end"
    st = Stamper(k, dbg)
    k(f"s_cmp_ge_u32 s2, 480\ns_cbranch_scc1 {END}")
    st.start()
    wave_id(k, 4, 1)
    k("v_and_b32 v1, 63, v0")
    BR = k.label("brole")
    k(f"s_cmp_ge_u32 s2, 160\ns_cbranch_scc1 {BR}")
    hiA = gen_A3(k, st, END, store_flags)
    st.dump(44, END, 4)
    k(f"s_branch {END}")
    k(f"{BR}:")
    if noB: k(f"s_branch {END}")
    k(f"s_cmp_ge_u32 s4, 4\ns_cbranch_scc1 {END}")
    st.n = 0
    hiB = gen_B3(k, st, store_flags)
    st.dump(56, END, 4)
    k(f"{END}:\ns_endpgm")
    print("vgprs A", hiA, "B", hiB)
    return k

if __name__ == "__main__":
    out = sys.argv[1]
    mode = sys.argv[2] if len(sys.argv) > 2 else "full"
    dbg = "dbg" in sys.argv
    sf = ""
    for a in sys.argv:
        if a.startswith("sf="): sf = a[3:].replace("_", " ")
    k1 = gen_k1(dbg, sf, "noB" in sys.argv)
    if mode == "k1":
        build([k1], [k1], out)
    else:
        k2 = k2mod.gen_k2(dbg)
        build([k1, k2], [k1, k2], out)
```

```python
import sys
from common import *
from ka3 import gen_A3
from kb3 import gen_B3
import k2 as k2mod

def gen_k1(dbg=False, store_flags="", noB=False):
    k = Kern("k1_kernel", 480, 384, lds=81920, vgpr=168, sgpr=100)
    END = k.name + "_end"
    st = Stamper(k, dbg)
    k(f"s_cmp_ge_u32 s2, 480\ns_cbranch_scc1 {END}")
    st.start()
    wave_id(k, 4, 1)
    k("v_and_b32 v1, 63, v0")
    BR = k.label("brole")
    k(f"s_cmp_ge_u32 s2, 160\ns_cbranch_scc1 {BR}")
    hiA = gen_A3(k, st, END, store_flags)
    st.dump(44, END, 4)
    k(f"s_branch {END}")
    k(f"{BR}:")
    if noB: k(f"s_branch {END}")
    k(f"s_cmp_ge_u32 s4, 4\ns_cbranch_scc1 {END}")
    st.n = 0
    hiB = gen_B3(k, st, store_flags)
    st.dump(56, END, 4)
    k(f"{END}:\ns_endpgm")
    print("vgprs A", hiA, "B", hiB)
    return k

if __name__ == "__main__":
    out = sys.argv[1]
    mode = sys.argv[2] if len(sys.argv) > 2 else "full"
    dbg = "dbg" in sys.argv
    sf = ""
    for a in sys.argv:
        if a.startswith("sf="): sf = a[3:].replace("_", " ")
    k1 = gen_k1(dbg, sf, "noB" in sys.argv)
    if mode == "k1":
        build([k1], [k1], out)
    else:
        k2 = k2mod.gen_k2(dbg)
        ks = [k1, k2]; ls = [k1, k2]
        n_empty = 0
        for a in sys.argv:
            if a.startswith("empty="): n_empty = int(a[6:])
        if n_empty:
            e = Kern("e_kernel", 256, 64, vgpr=8, sgpr=16)
            e("s_endpgm")
            ks.append(e); ls = ls + [e] * n_empty
        build(ks, ls, out)
```

```python
from asmlib import *
WS_H = 0
WS_CP = 0x500000
WS_YB = 0x700000
WS_G = 0xA00000
WS_AGG = 0xA10000
WS_SIZE = 0xB00000
LOG2E = f2u(1.4426950408889634)
NLOG2E = f2u(-1.4426950408889634)
INV2PI = f2u(0.15915494309189535)
MASKHI = "0xffff0000"

class Regs:
    def __init__(self, start=0, limit=256):
        self.n = start; self.limit = limit; self.hi = start
    def get(self, cnt=1, align=1):
        if cnt >= 2 and align == 1:
            align = 2
        r = (self.n + align - 1) // align * align
        self.n = r + cnt
        assert self.n <= self.limit, f"out of regs {self.n}"
        self.hi = max(self.hi, self.n)
        return r
    def mark(self): return self.n
    def release(self, m): self.n = m

def wave_id(k, sdst, vtmp):
    k(f"v_lshrrev_b32 v{vtmp}, 6, v0")
    k("s_nop 0")
    k(f"v_readfirstlane_b32 s{sdst}, v{vtmp}")
    k("s_nop 1")

def lo16(k, d, src): k(f"v_lshlrev_b32 v{d}, 16, v{src}")
def hi16(k, d, src): k(f"v_and_b32 v{d}, {MASKHI}, v{src}")

WS_XR = 0xB00000
WS_SIZE2 = 0xE00000
WS_ST = 0xD80000
DBG_FLAG = 128

def mk_srd(k, dst, src, size):
    if dst != src:
        k(f"s_mov_b32 s{dst}, s{src}\ns_mov_b32 s{dst+1}, s{src+1}")
    k(f"s_mov_b32 s{dst+2}, {size}\ns_mov_b32 s{dst+3}, 0x20000")

class Stamper:
    def __init__(self, k, on, vreg=167):
        self.k = k; self.on = on; self.v = vreg; self.n = 0
    def __call__(self, i):
        if self.on:
            self.k(f"s_memtime s[80:81]\ns_waitcnt lgkmcnt(0)\nv_writelane_b32 v{self.v}, s80, {i}")
            self.n = max(self.n, i)
    def start(self):
        if self.on: self(0)
    def dump(self, ws_srd, end_label, wave_sreg, off=0, wave=0):
        if not self.on: return
        k = self.k
        k("s_waitcnt vmcnt(0)")
        self(30)
        k(f"v_writelane_b32 v{self.v}, s98, 27")
        k(f"s_getreg_b32 s80, hwreg(HW_REG_XCC_ID)\nv_writelane_b32 v{self.v}, s80, 29")
        k(f"s_getreg_b32 s80, hwreg(HW_REG_HW_ID)\nv_writelane_b32 v{self.v}, s80, 28")
        k(f"s_memrealtime s[80:81]\ns_waitcnt lgkmcnt(0)\nv_writelane_b32 v{self.v}, s80, 31")
        k(f"s_cmp_lg_u32 s{wave_sreg}, {wave}\ns_cbranch_scc1 {end_label}")
        k(f"s_lshl_b32 s72, s2, 7\ns_add_u32 s72, s72, {WS_ST + off}\nv_lshlrev_b32 v3, 2, v1")
        k("s_mov_b64 exec, 0xffffffff")
        k(f"buffer_store_dword v{self.v}, v3, s[{ws_srd}:{ws_srd+3}], s72 offen")

def _dumpB(self, ws_srd, end_label):
    k = self.k
    k("s_waitcnt vmcnt(0)")
    self(30)
    k(f"s_memrealtime s[80:81]\ns_waitcnt lgkmcnt(0)\nv_writelane_b32 v{self.v}, s80, 31")
    k(f"s_cmp_lg_u32 s3, 0\ns_cbranch_scc1 {end_label}")
    k(f"s_add_u32 s72, s2, 256\ns_lshl_b32 s72, s72, 7\ns_add_u32 s72, s72, {WS_ST}\nv_lshlrev_b32 v3, 2, v1")
    k("s_mov_b64 exec, 0xffffffff")
    k(f"buffer_store_dword v{self.v}, v3, s[{ws_srd}:{ws_srd+3}], s72 offen")
Stamper.dumpB = _dumpB

class LdsTrack:
    def __init__(self, k):
        self.k = k; self.ops = []; self.done = 0
    def issue(self, txt, tag):
        self.k(txt); self.ops.append(tag)
    def need(self, *tags):
        last = -1
        for i in range(len(self.ops) - 1, -1, -1):
            if self.ops[i] in tags and i > last:
                last = i; break
        idx = max((i for i, t in enumerate(self.ops) if t in tags), default=-1)
        idxs = []
        for t in tags:
            c = [i for i, x in enumerate(self.ops) if x == t]
            if c: idxs.append(c[-1])
        if not idxs: return
        idx = max(idxs)
        if idx < self.done: return
        n = len(self.ops) - 1 - idx
        n = min(n, 15)
        self.k(f"s_waitcnt lgkmcnt({n})")
        self.done = len(self.ops) - n
    def all_done(self):
        self.k("s_waitcnt lgkmcnt(0)"); self.done = len(self.ops)

WS_FL = 0xA40000
```

```python
from common import *
from kb import cmul, interleave, nib64
from ka import direct_pow, cfma

SROW = 288; SW = 9344; EX = 4224; RU = 9216; V1OFF = 4576
UB_AB = 4 * SW
UB_BB = 8 * SW
RB = 56320
UN = 16384
FLG = RB + 6 * UN
F_FULL = 0; F_FX = 16; F_FB = 32; F_TAG = 48; F_XOK = 52; F_BP = 64; F_HD = 96
EXA = FLG + 256
DUMMY = EXA + 2048
LDS1 = DUMMY + 512
TSCB = 112640
SB = 98

def set_flag(k, vF, off, val, vt):
    k(f"s_mov_b64 exec, 1\nv_mov_b32 v{vt}, {val}\nds_write_b32 v{vF}, v{vt} offset:{off}\ns_mov_b64 exec, -1")

def spin(k, vF, off, val, vt, st, nw=1, sleep=1):
    L = k.label("sp"); D = k.label("spd")
    k(f"{L}:")
    if nw == 1: k(f"ds_read_b32 v{vt}, v{vF} offset:{off}")
    elif nw == 2: k(f"ds_read_b64 v[{vt}:{vt+1}], v{vF} offset:{off}")
    else: k(f"ds_read_b128 v[{vt}:{vt+3}], v{vF} offset:{off}")
    k("s_waitcnt lgkmcnt(0)")
    if nw == 2: k(f"v_min_u32 v{vt}, v{vt}, v{vt+1}")
    if nw == 4: k(f"v_min_u32 v{vt}, v{vt}, v{vt+1}\nv_min_u32 v{vt+2}, v{vt+2}, v{vt+3}\nv_min_u32 v{vt}, v{vt}, v{vt+2}")
    k(f"s_nop 0\nv_readfirstlane_b32 s{st}, v{vt}\ns_nop 1\ns_cmp_ge_u32 s{st}, {val}\ns_cbranch_scc1 {D}")
    k(f"s_cmp_eq_u32 s{SB}, 0\ns_cbranch_scc1 {D}\ns_sub_u32 s{SB}, s{SB}, 1\ns_sleep {sleep}\ns_branch {L}")
    k(f"{D}:")

import os
PRIO_C = int(os.environ.get("PRIO_C", 2)); PRIO_P = int(os.environ.get("PRIO_P", 3)); PSLEEP = int(os.environ.get("PSLEEP", 0))
def gen_Acons(k, stamp, store_flags):
    k(f"s_setprio {PRIO_C}")
    R = Regs(2, 167)
    vc = R.get(); vh = R.get(); vF = R.get()
    accR = R.get(32, 4); accI = R.get(32, 4)
    aA = R.get(); aA1 = R.get(); aB = R.get(); aB1 = R.get()
    t = [R.get() for _ in range(5)]
    L1 = R.get(2, 2); L16 = R.get(2, 2); L32 = R.get(2, 2); Lh = R.get(2, 2); LW = R.get(8, 2); CO = R.get(2, 2)
    aL = R.get(); th = R.get(); prm = R.get(4, 4); vtag = prm + 1; fl = prm + 2; fl4 = prm
    A = R.get(32, 4); BB = [R.get(8, 4) for _ in range(3)]
    k(f"v_and_b32 v{vc}, 15, v1\nv_lshrrev_b32 v{vh}, 4, v1\nv_mov_b32 v{vF}, {FLG}")
    k("s_lshl_b32 s74, s6, 2\ns_add_u32 s74, s74, s4\ns_lshl_b32 s74, s74, 4")
    k("s_lshl_b32 s75, s4, 12")
    k(f"v_add_u32 v{t[0]}, s74, v{vc}\nv_lshlrev_b32 v{t[0]}, 1, v{t[0]}")
    k("s_waitcnt lgkmcnt(0)")
    mk_srd(k, 52, 10, 1280); mk_srd(k, 56, 12, 1280); mk_srd(k, 60, 22, 1280); mk_srd(k, 44, 30, WS_SIZE2)
    k(f"buffer_load_ushort v{prm}, v{t[0]}, s[52:55], 0 offen\nbuffer_load_ushort v{prm+1}, v{t[0]}, s[56:59], 0 offen\nbuffer_load_ushort v{prm+2}, v{t[0]}, s[60:63], 0 offen")
    k(f"v_lshrrev_b32 v{t[0]}, 2, v{vc}\nv_and_b32 v{t[1]}, 1, v{vc}\nv_lshl_add_u32 v{t[2]}, v{t[0]}, 1, v{t[1]}")
    k(f"v_lshlrev_b32 v{t[3]}, 4, v{t[2]}")
    k(f"v_lshrrev_b32 v{t[4]}, 1, v{vc}\nv_and_b32 v{t[4]}, 1, v{t[4]}\nv_add_u32 v{t[3]}, v{t[3]}, v{t[4]}")
    k(f"v_xor_b32 v{t[2]}, v{t[2]}, v{vh}\nv_lshlrev_b32 v{t[2]}, 4, v{t[2]}\nv_lshl_add_u32 v{aA}, v{t[3]}, 7, v{t[2]}")
    k(f"v_add_u32 v{aA}, {RB}, v{aA}\nv_xor_b32 v{aA1}, 64, v{aA}")
    k(f"v_lshrrev_b32 v{t[2]}, 1, v{vc}\nv_xor_b32 v{t[2]}, v{t[2]}, v{vh}\nv_lshlrev_b32 v{t[2]}, 4, v{t[2]}\nv_lshl_add_u32 v{aB}, v{vc}, 7, v{t[2]}")
    k(f"v_add_u32 v{aB}, s75, v{aB}\nv_add_u32 v{aB}, {RB + 3*UN}, v{aB}\nv_xor_b32 v{aB1}, 64, v{aB}")
    for i in range(32):
        k(f"v_mov_b32 v{accR+i}, 0\nv_mov_b32 v{accI+i}, 0")
    k("s_waitcnt vmcnt(0)")
    k(f"v_lshlrev_b32 v{prm}, 16, v{prm}\nv_lshlrev_b32 v{prm+1}, 16, v{prm+1}\nv_lshlrev_b32 v{prm+2}, 16, v{prm+2}")
    k(f"v_mul_f32 v{prm+2}, {LOG2E:#x}, v{prm+2}\nv_exp_f32 v{prm+2}, v{prm+2}\ns_nop 0\nv_cvt_pk_bf16_f32 v{prm+2}, v{prm+2}, v{prm+2}\nv_lshlrev_b32 v{prm+2}, 16, v{prm+2}")
    k(f"v_mul_f32 v{aL}, v{prm+2}, v{prm}\nv_mul_f32 v{th}, v{prm+2}, v{prm+1}\nv_mul_f32 v{aL}, {LOG2E:#x}, v{aL}\nv_mul_f32 v{th}, {INV2PI:#x}, v{th}")
    direct_pow(k, L1, None, aL, th, t[0], t[1])
    k(f"v_add_f32 v{t[2]}, -1.0, v{L1}\nv_mul_f32 v{t[3]}, v{prm}, v{prm}\nv_fmac_f32 v{t[3]}, v{prm+1}, v{prm+1}\nv_rcp_f32 v{t[3]}, v{t[3]}")
    k(f"v_mul_f32 v{CO}, v{t[2]}, v{prm}\nv_fmac_f32 v{CO}, v{L1+1}, v{prm+1}\nv_mul_f32 v{CO+1}, v{L1+1}, v{prm}\nv_fma_f32 v{CO+1}, -v{t[2]}, v{prm+1}, v{CO+1}")
    k(f"v_add_f32 v{t[3]}, v{t[3]}, v{t[3]}\nv_mul_f32 v{CO}, v{CO}, v{t[3]}\nv_mul_f32 v{CO+1}, v{CO+1}, v{t[3]}")
    direct_pow(k, L16, 16, aL, th, t[0], t[1])
    direct_pow(k, L32, 32, aL, th, t[0], t[1])
    k(f"v_cvt_f32_u32 v{t[2]}, v{vh}\nv_mul_f32 v{t[2]}, {f2u(32.0):#x}, v{t[2]}")
    direct_pow(k, Lh, t[2], aL, th, t[0], t[1], True)
    lam_code = []
    class KK:
        def __call__(self, txt): lam_code.extend([l for l in txt.split("\n") if l.strip()])
    kk = KK()
    for z in range(4):
        kk(f"s_sub_i32 s23, s5, {1 + 4*z}\nv_sub_u32 v{t[2]}, s23, v{vh}\nv_max_i32 v{t[2]}, 0, v{t[2]}\nv_cvt_f32_i32 v{t[2]}, v{t[2]}\nv_mul_f32 v{t[2]}, {f2u(128.0):#x}, v{t[2]}")
        direct_pow(kk, LW + 2*z, t[2], aL, th, t[0], t[1], True)
    lam_left = lam_code[:]
    def lam_take(n):
        out = lam_left[:n]; del lam_left[:n]
        return "\n".join(out) if out else None
    stamp(1)
    spin(k, vF, F_FULL, 1, fl4, 68, 4)
    stamp(2)
    LT = LdsTrack(k)
    def rdBt(q):
        s_, ks = q >> 1, q & 1
        buf = BB[q % 3]; rb = aB1 if ks else aB; bo = (s_ % 3) * UN
        LT.issue(f"ds_read_b128 v[{buf}:{buf+3}], v{rb} offset:{bo}", ("B", q))
        LT.issue(f"ds_read_b128 v[{buf+4}:{buf+7}], v{rb} offset:{bo+2048}", ("B", q))
    def rdAt(m, q):
        ra = aA1 if (q & 1) else aA
        LT.issue(f"ds_read_b128 v[{A+4*m}:{A+4*m+3}], v{ra} offset:{((q >> 1) % 3)*UN + 256*m}", ("A", m))
    def mm(m, q):
        B = BB[q % 3]
        LT.need(("A", m), ("B", q))
        k(f"v_mfma_f32_16x16x32_bf16 v[{accR+4*m}:{accR+4*m+3}], v[{A+4*m}:{A+4*m+3}], v[{B}:{B+3}], v[{accR+4*m}:{accR+4*m+3}]")
        k(f"v_mfma_f32_16x16x32_bf16 v[{accI+4*m}:{accI+4*m+3}], v[{A+4*m}:{A+4*m+3}], v[{B+4}:{B+7}], v[{accI+4*m}:{accI+4*m+3}]")
    vFw = t[3]; vcnt = t[4]
    k(f"s_lshl_b32 s68, s4, 2\ns_add_u32 s68, s68, {FLG}\ns_mov_b32 s69, {DUMMY}")
    k(f"v_lshl_add_u32 v{vFw}, v1, 2, s69\nv_mov_b32 v{vcnt}, s68\nv_cmp_eq_u32 vcc, 0, v1\ns_nop 1\nv_cndmask_b32 v{vFw}, v{vFw}, v{vcnt}, vcc")
    k(f"v_mov_b32 v{vcnt}, 0")
    vFr = fl4
    k(f"v_and_b32 v{vFr}, 3, v1\nv_lshlrev_b32 v{vFr}, 2, v{vFr}\nv_add_u32 v{vFr}, {FLG + F_FULL}, v{vFr}")
    vFv = fl4 + 1
    def flagw(off):
        LT.issue(f"ds_write_b32 v{vFw}, v{vcnt} offset:{off}", ("W", off))
    rdBt(0); rdBt(1)
    for m in range(8): rdAt(m, 0)
    for s_ in range(10):
        q0 = 2*s_
        if s_ == 4: stamp(9)
        for m in range(8):
            mm(m, q0)
            rdAt(m, q0 + 1)
            if m == 0:
                k(f"v_add_u32 v{vcnt}, 1, v{vcnt}")
                if s_ + 3 <= 9:
                    LT.need(("B", q0 + 1))
                    flagw(F_FB)
            if m == 5 and s_ < 9:
                LT.issue(f"ds_read_b32 v{vFv}, v{vFr}", ("F", s_))
            f = lam_take(2)
            if f: k(f)
        if s_ == 4: stamp(10)
        for m in range(8):
            mm(m, q0 + 1)
            if s_ < 9:
                if m == 0:
                    if s_ == 4: stamp(11)
                    OK_ = k.label("ok"); SP_ = k.label("fs")
                    LT.need(("F", s_))
                    k(f"v_cmp_le_u32 vcc, {s_+2}, v{vFv}\ns_cmp_eq_u64 vcc, -1\ns_cbranch_scc1 {OK_}")
                    k(f"{SP_}:")
                    k(f"ds_read_b32 v{vFv}, v{vFr}\ns_waitcnt lgkmcnt(0)\nv_cmp_le_u32 vcc, {s_+2}, v{vFv}\ns_cmp_eq_u64 vcc, -1\ns_cbranch_scc1 {OK_}")
                    k(f"s_cmp_eq_u32 s{SB}, 0\ns_cbranch_scc1 {OK_}\ns_sub_u32 s{SB}, s{SB}, 1\ns_branch {SP_}")
                    k(f"{OK_}:")
                    if s_ == 1: stamp(3)
                    if s_ == 4: stamp(4)
                rdAt(m, q0 + 2)
                if m == 1: rdBt(q0 + 2)
                if m == 3: rdBt(q0 + 3)
            if m == 2 and s_ + 3 <= 9:
                LT.need(("A", 7))
                flagw(F_FX)
            f = lam_take(2)
            if f: k(f)
        if s_ == 4: stamp(12)
    assert not lam_left, len(lam_left)
    LT.all_done()
    k(f"v_mov_b32 v{vcnt}, 10")
    flagw(F_FX)
    stamp(5)
    T = Regs(A, 167)
    Sa = T.get(4, 2); Sb = T.get(4, 2); tt = T.get(4, 2)
    LAM = f"v[{L1}:{L1+1}]"
    def step(dst, src, zr, zi, lam=LAM):
        k(f"v_pk_fma_f32 v[{tt}:{tt+1}], {lam}, v[{src}:{src+1}], v[{zr}:{zr+1}] op_sel:[0,0,0] op_sel_hi:[0,1,1]")
        k(f"v_pk_fma_f32 v[{tt+2}:{tt+3}], {lam}, v[{src+2}:{src+3}], v[{zi}:{zi+1}] op_sel:[0,0,0] op_sel_hi:[0,1,1]")
        k(f"v_pk_fma_f32 v[{dst}:{dst+1}], {lam}, v[{src+2}:{src+3}], v[{tt}:{tt+1}] op_sel:[1,0,0] op_sel_hi:[1,1,1] neg_lo:[1,0,0] neg_hi:[1,0,0]")
        k(f"v_pk_fma_f32 v[{dst+2}:{dst+3}], {lam}, v[{src}:{src+1}], v[{tt+2}:{tt+3}] op_sel:[1,0,0] op_sel_hi:[1,1,1]")
    k("s_nop 7")
    k(f"v_mov_b32 v{Sa}, v{accR}\nv_mov_b32 v{Sa+1}, v{accR+1}\nv_mov_b32 v{Sa+2}, v{accI}\nv_mov_b32 v{Sa+3}, v{accI+1}")
    cur, nxt = Sa, Sb
    for s_ in range(1, 16):
        m = s_ >> 1; pr = s_ & 1
        step(nxt, cur, accR + 4*m + 2*pr, accI + 4*m + 2*pr)
        cur, nxt = nxt, cur
    AG = T.get(4, 2)
    for i in range(4): k(f"v_mov_b32 v{AG+i}, v{cur+i}")
    SC16 = T.get(16, 4)
    G = SC16
    cfma(k, G, G+1, L16, L16+1, AG, AG+2, AG+1, AG+3)
    ex = T.get(); exr = T.get()
    k(f"s_lshl_b32 s68, s4, 9\ns_add_u32 s68, s68, {EXA}\nv_lshl_add_u32 v{ex}, v1, 3, s68\nv_lshl_add_u32 v{exr}, v{vc}, 3, s68")
    k(f"ds_write_b64 v{ex}, v[{G}:{G+1}]\nds_read_b32 v{vtag}, v{vF} offset:{F_TAG}\ns_waitcnt lgkmcnt(0)")
    GG = T.get(8, 2)
    for h in range(4): k(f"ds_read_b64 v[{GG+2*h}:{GG+2*h+1}], v{exr} offset:{128*h}")
    TGO = k.label("tgo")
    k(f"v_readfirstlane_b32 s68, v{vtag}\ns_nop 1\ns_cmp_lg_u32 s68, 0\ns_cbranch_scc1 {TGO}")
    spin(k, vF, F_TAG, 1, vtag, 68, 1)
    k(f"{TGO}:")
    k("s_waitcnt lgkmcnt(0)")
    P2 = SC16 + 2; P3 = SC16 + 4; TOT = SC16 + 8; PEX = T.get(2, 2)
    cfma(k, P2, P2+1, L32, L32+1, GG, GG+1, GG+2, GG+3)
    cfma(k, P3, P3+1, L32, L32+1, P2, P2+1, GG+4, GG+5)
    cfma(k, TOT, TOT+2, L32, L32+1, P3, P3+1, GG+6, GG+7)
    k(f"v_mov_b32 v{TOT+1}, v{vtag}\nv_mov_b32 v{TOT+3}, v{vtag}")
    pa = T.get()
    k(f"v_add_u32 v{pa}, s74, v{vc}\nv_lshlrev_b32 v{pa}, 4, v{pa}")
    k(f"s_mul_i32 s68, s5, {640*16}\ns_add_u32 s68, s68, {WS_AGG}")
    k("s_mov_b64 exec, 0xffff")
    k(f"buffer_store_dwordx4 v[{TOT}:{TOT+3}], v{pa}, s[44:47], s68 offen sc1")
    k("s_mov_b64 exec, -1")
    k(f"v_mov_b32 v{PEX}, 0\nv_mov_b32 v{PEX+1}, 0")
    for h, src in ((1, GG), (2, P2), (3, P3)):
        k(f"v_cmp_eq_u32 vcc, {h}, v{vh}\ns_nop 1\nv_cndmask_b32 v{PEX}, v{PEX}, v{src}, vcc\nv_cndmask_b32 v{PEX+1}, v{PEX+1}, v{src+1}, vcc")
    stamp(6)
    COP = f"v[{CO}:{CO+1}]"
    hh = SC16 + 12
    for m in range(8):
        for pr in range(2):
            zr = accR + 4*m + 2*pr; zi = accI + 4*m + 2*pr
            k(f"v_pk_mul_f32 v[{hh}:{hh+1}], {COP}, v[{zr}:{zr+1}] op_sel:[0,0] op_sel_hi:[0,1]")
            k(f"v_pk_mul_f32 v[{hh+2}:{hh+3}], {COP}, v[{zi}:{zi+1}] op_sel:[0,0] op_sel_hi:[0,1] neg_lo:[1,0] neg_hi:[1,0]")
            k(f"v_pk_fma_f32 v[{hh+2}:{hh+3}], {COP}, v[{zr}:{zr+1}], v[{hh+2}:{hh+3}] op_sel:[1,0,0] op_sel_hi:[1,1,1] neg_lo:[1,0,0] neg_hi:[1,0,0]")
            k(f"v_pk_fma_f32 v[{zr}:{zr+1}], {COP}, v[{zi}:{zi+1}], v[{hh}:{hh+1}] op_sel:[1,0,0] op_sel_hi:[1,1,1] neg_lo:[1,0,0] neg_hi:[1,0,0]")
            k(f"v_mov_b32 v{zi}, v{hh+2}\nv_mov_b32 v{zi+1}, v{hh+3}")
    LC = T.get(2, 2)
    k(f"v_mov_b32 v{LC}, v{L1}\nv_sub_f32 v{LC+1}, 0, v{L1+1}")
    CAR = T.get(2, 2); m_lb = T.mark(); LB = SC16; la = T.get()
    k(f"v_mov_b32 v{CAR}, 0\nv_mov_b32 v{CAR+1}, 0")
    NOLB = k.label("nolb")
    k(f"s_cmp_eq_u32 s5, 0\ns_cbranch_scc1 {NOLB}")
    k(f"v_mul_u32_u24 v{la}, {640*16}, v{vh}\nv_add_u32 v{la}, v{la}, v{pa}")
    POLL = k.label("poll"); GOT = k.label("got")
    k(f"{POLL}:")
    for z in range(4):
        k(f"s_mov_b32 s68, {WS_AGG + 4*z*640*16}")
        k(f"buffer_load_dwordx4 v[{LB+4*z}:{LB+4*z+3}], v{la}, s[44:47], s68 offen sc1")
    k("s_waitcnt vmcnt(0)")
    k("s_mov_b64 s[14:15], -1")
    for z in range(4):
        k(f"v_cmp_eq_u32 s[16:17], v{LB+4*z+1}, v{vtag}\nv_cmp_eq_u32 s[18:19], v{LB+4*z+3}, v{vtag}")
        k(f"v_add_u32 v{t[0]}, {4*z}, v{vh}\nv_cmp_le_u32 s[20:21], s5, v{t[0]}")
        k("s_and_b64 s[16:17], s[16:17], s[18:19]\ns_or_b64 s[16:17], s[16:17], s[20:21]\ns_and_b64 s[14:15], s[14:15], s[16:17]")
    k(f"s_cmp_eq_u64 s[14:15], -1\ns_cbranch_scc1 {GOT}")
    k(f"s_cmp_eq_u32 s{SB}, 0\ns_cbranch_scc1 {GOT}\ns_sub_u32 s{SB}, s{SB}, 1\ns_sleep 2\ns_branch {POLL}")
    k(f"{GOT}:")
    for z in range(4):
        k(f"v_add_u32 v{t[0]}, {4*z}, v{vh}\nv_cmp_gt_u32 vcc, s5, v{t[0]}\ns_nop 1")
        k(f"v_cndmask_b32 v{LB+4*z}, 0, v{LB+4*z}, vcc\nv_cndmask_b32 v{LB+4*z+2}, 0, v{LB+4*z+2}, vcc")
        cfma(k, CAR, CAR+1, LW+2*z, LW+2*z+1, LB+4*z, LB+4*z+2, CAR, CAR+1)
    k(f"ds_write_b64 v{ex}, v[{CAR}:{CAR+1}]\ns_waitcnt lgkmcnt(0)")
    for h in range(4): k(f"ds_read_b64 v[{GG+2*h}:{GG+2*h+1}], v{exr} offset:{128*h}")
    k("s_waitcnt lgkmcnt(0)")
    k(f"v_add_f32 v{CAR}, v{GG}, v{GG+2}\nv_add_f32 v{CAR+1}, v{GG+1}, v{GG+3}\nv_add_f32 v{GG+4}, v{GG+4}, v{GG+6}\nv_add_f32 v{GG+5}, v{GG+5}, v{GG+7}")
    k(f"v_add_f32 v{CAR}, v{CAR}, v{GG+4}\nv_add_f32 v{CAR+1}, v{CAR+1}, v{GG+5}")
    k(f"{NOLB}:")
    stamp(7)
    T.release(m_lb)
    IA = T.get(2, 2); IB = T.get(2, 2)
    cfma(k, IA, IA+1, Lh, Lh+1, CAR, CAR+1, PEX, PEX+1)
    cfma(k, IB, IB+1, L16, L16+1, IA, IA+1, AG, AG+2)
    for src, lane in ((IA, 0), (IB, 1)):
        k(f"v_mul_f32 v{Sa+lane}, v{CO}, v{src}\nv_fma_f32 v{Sa+lane}, -v{CO+1}, v{src+1}, v{Sa+lane}")
        k(f"v_mul_f32 v{Sa+2+lane}, -v{CO}, v{src+1}\nv_fma_f32 v{Sa+2+lane}, -v{CO+1}, v{src}, v{Sa+2+lane}")
    spin(k, vF, F_FX, 10, GG, 68, 4)
    HS = RB; HR = 272
    ha = T.get(); cv = T.get(2, 2)
    k(f"v_mul_u32_u24 v{ha}, {32*HR}, v{vh}\nv_lshl_add_u32 v{ha}, v{vc}, 1, v{ha}\ns_lshl_b32 s68, s4, 5\ns_add_u32 s68, s68, {HS}\nv_add_u32 v{ha}, s68, v{ha}")
    LCP = f"v[{LC}:{LC+1}]"
    cur, nxt = Sa, Sb
    for s_ in range(16):
        m = s_ >> 1; pr = s_ & 1
        step(nxt, cur, accR + 4*m + 2*pr, accI + 4*m + 2*pr, LCP)
        cur, nxt = nxt, cur
        k(f"v_cvt_pk_bf16_f32 v{cv}, v{cur}, v{cur+1}\nv_cvt_pk_bf16_f32 v{cv+1}, v{cur+2}, v{cur+3}")
        k(f"ds_write_b16 v{ha}, v{cv} offset:{s_*HR}\nds_write_b16_d16_hi v{ha}, v{cv} offset:{(16+s_)*HR}")
        k(f"ds_write_b16 v{ha}, v{cv+1} offset:{s_*HR+128}\nds_write_b16_d16_hi v{ha}, v{cv+1} offset:{(16+s_)*HR+128}")
    k("s_waitcnt lgkmcnt(0)")
    k(f"ds_write_b32 v{vFw}, v{vcnt} offset:{F_HD}")
    stamp(8)
    spin(k, vF, F_HD, 1, GG, 68, 4)
    k(f"s_lshl_b32 s68, s4, 5\nv_add_u32 v{t[0]}, s68, v{vh}\nv_mul_u32_u24 v{t[1]}, {HR}, v{t[0]}\nv_lshl_add_u32 v{t[1]}, v{vc}, 4, v{t[1]}\nv_add_u32 v{t[1]}, {HS}, v{t[1]}")
    for z in range(8):
        k(f"ds_read_b128 v[{accR+4*z}:{accR+4*z+3}], v{t[1]} offset:{4*z*HR}")
    k(f"v_mul_u32_u24 v{t[0]}, 2560, v{t[0]}\nv_lshl_add_u32 v{t[0]}, v{vc}, 4, v{t[0]}")
    k(f"s_lshl_b32 s68, s5, 7\ns_mul_i32 s68, s68, 2560\ns_lshl_b32 s69, s6, 8\ns_add_u32 s68, s68, s69")
    k("s_waitcnt lgkmcnt(0)")
    for z in range(8):
        k(f"s_add_u32 s69, s68, {4*z*2560}")
        k(f"buffer_store_dwordx4 v[{accR+4*z}:{accR+4*z+3}], v{t[0]}, s[44:47], s69 offen {store_flags}")
    return max(R.hi, T.hi)

def gen_Aprod(k, END, stamp=lambda i: None, dump=None):
    k(f"s_setprio {PRIO_P}")
    R = Regs(2, 167)
    vc = R.get(); vh = R.get(); vF = R.get(); vFw = R.get()
    vX = [R.get() for _ in range(4)]
    t = [R.get() for _ in range(8)]
    vtag = R.get(); fl = R.get(4, 4)
    k(f"v_and_b32 v{vc}, 15, v1\nv_lshrrev_b32 v{vh}, 4, v1\nv_mov_b32 v{vF}, {FLG}")
    k(f"s_lshl_b32 s68, s7, 2\nv_add_u32 v{vFw}, s68, v{vF}")
    k(f"v_lshrrev_b32 v{t[0]}, 3, v1\nv_mul_u32_u24 v{t[0]}, 1280, v{t[0]}\nv_and_b32 v{t[1]}, 7, v1")
    def full(val):
        k(f"s_mov_b64 exec, 1\nv_mov_b32 v{t[6]}, {val}\nds_write_b32 v{vFw}, v{t[6]} offset:{F_FULL}\ns_mov_b64 exec, -1")
    BP = k.label("bprod")
    k(f"s_cmp_ge_u32 s7, 2\ns_cbranch_scc1 {BP}")
    k("s_lshl_b32 s68, s7, 2")
    for f in range(4):
        k(f"s_add_u32 s69, s68, {f}\nv_xor_b32 v{t[2]}, s69, v{t[1]}\nv_lshl_add_u32 v{vX[f]}, v{t[2]}, 4, v{t[0]}")
    k("s_lshl_b32 s72, s5, 7\ns_lshl_b32 s68, s7, 6\ns_add_u32 s72, s72, s68\ns_mul_i32 s72, s72, 1280")
    k(f"s_lshl_b32 s75, s7, 13\ns_add_u32 s75, s75, {RB}")
    k("s_lshl_b32 s76, s6, 7")
    k("s_waitcnt lgkmcnt(0)")
    mk_srd(k, 32, 8, SIZE["x"])
    def issueX(sl):
        slot = (sl % 3) * UN
        k("s_add_u32 s77, s72, s76")
        for g in range(8):
            k(f"s_add_u32 m0, s75, {slot + 1024*g}")
            if g: k(f"s_add_u32 s77, s77, {8*1280}")
            else: k("s_nop 0")
            k(f"buffer_load_dwordx4 v{vX[g >> 1]}, s[32:35], s77 offen lds")
        k("s_add_u32 s76, s76, 128\ns_cmp_eq_u32 s76, 1280\ns_cselect_b32 s76, 0, s76")
    issueX(0); issueX(1)
    mk_srd(k, 48, 28, 256)
    stamp(1)
    k("s_waitcnt vmcnt(8)")
    full(1)
    stamp(2)
    issueX(2)
    k("s_waitcnt vmcnt(8)")
    full(2)
    for s_ in range(8):
        if s_ + 3 <= 9:
            spin(k, vF, F_FX, s_ + 1, fl, 68, 4, sleep=PSLEEP)
        if s_ == 4: stamp(3)
        k("s_waitcnt vmcnt(0)")
        full(s_ + 3)
        if s_ == 3:
            k(f"v_mov_b32 v{t[5]}, 0\nbuffer_load_dword v{vtag}, v{t[5]}, s[48:51], 0 offen sc1")
        if s_ == 6:
            TG = k.label("tg"); NP = k.label("np"); NG_ = k.label("ngot")
            k(f"s_cmp_lg_u32 s7, 0\ns_cbranch_scc1 {TG}")
            k(f"{NP}:")
            k(f"v_readfirstlane_b32 s9, v{vtag}\ns_nop 1\ns_cmp_lg_u32 s9, 0\ns_cbranch_scc1 {NG_}")
            k(f"s_cmp_eq_u32 s{SB}, 0\ns_cbranch_scc1 {NG_}\ns_sub_u32 s{SB}, s{SB}, 1")
            k(f"s_sleep 4\nbuffer_load_dword v{vtag}, v{t[5]}, s[48:51], 0 offen sc1\ns_waitcnt vmcnt(0)\ns_branch {NP}")
            k(f"{NG_}:")
            k(f"s_mov_b64 exec, 1\nv_mov_b32 v{t[6]}, s9\nds_write_b32 v{vF}, v{t[6]} offset:{F_TAG}\ns_mov_b64 exec, -1")
            k(f"{TG}:")
        if s_ + 3 <= 9:
            if s_ == 4: stamp(4)
            issueX(s_ + 3)
            if s_ == 4: stamp(5)
    if dump: dump()
    k(f"s_branch {END}")
    k(f"{BP}:")
    vB0, vB1 = vX[0], vX[1]
    k(f"v_xor_b32 v{t[2]}, v{vh}, v{t[1]}\nv_lshl_add_u32 v{vB0}, v{t[2]}, 4, v{t[0]}")
    k(f"v_xor_b32 v{t[2]}, 4, v{t[2]}\nv_lshl_add_u32 v{vB1}, v{t[2]}, 4, v{t[0]}")
    k("s_sub_u32 s7, s7, 2")
    k("s_lshl_b32 s73, s6, 6\ns_lshl_b32 s68, s7, 5\ns_add_u32 s73, s73, s68\ns_mul_i32 s73, s73, 1280")
    k(f"s_lshl_b32 s75, s7, 13\ns_add_u32 s75, s75, {RB}")
    k("s_lshl_b32 s79, s6, 7")
    k("s_waitcnt lgkmcnt(0)")
    mk_srd(k, 36, 14, SIZE["ABre"]); mk_srd(k, 40, 16, SIZE["ABim"])
    def issueB(sl):
        slot = (3 + sl % 3) * UN
        k("s_add_u32 s78, s73, s79")
        for w in range(2):
            for z in range(4):
                k(f"s_add_u32 m0, s75, {slot + 4096*w + 1024*z}")
                row = 16*w + 8*(z & 1)
                k(f"s_add_u32 s77, s78, {row*1280}")
                srd = 36 if z < 2 else 40
                k(f"buffer_load_dwordx4 v{vB0 if z % 2 == 0 else vB1}, s[{srd}:{srd+3}], s77 offen lds")
        k("s_add_u32 s79, s79, 128\ns_cmp_eq_u32 s79, 1280\ns_cselect_b32 s79, 0, s79")
    issueB(0); issueB(1)
    k("s_waitcnt vmcnt(8)")
    full(1)
    issueB(2)
    k("s_waitcnt vmcnt(8)")
    full(2)
    for s_ in range(8):
        if s_ + 3 <= 9:
            spin(k, vF, F_FB, s_ + 1, fl, 68, 4, sleep=PSLEEP)
        k("s_waitcnt vmcnt(0)")
        full(s_ + 3)
        if s_ + 3 <= 9:
            issueB(s_ + 3)
    k(f"s_branch {END}")
    return R.hi

def gen_gate(k, END):
    k("s_load_dwordx2 s[8:9], s[0:1], 0\ns_load_dwordx2 s[24:25], s[0:1], 144\ns_load_dwordx2 s[30:31], s[0:1], 168")
    R = Regs(2, 160)
    t = [R.get() for _ in range(4)]
    GWD = R.get(5); GX = R.get(40, 2); ga = R.get(8); res = R.get()
    k(f"v_lshlrev_b32 v{t[1]}, 2, v1\ns_mul_i32 s13, s5, 1280")
    k("s_waitcnt lgkmcnt(0)")
    mk_srd(k, 32, 8, SIZE["x"]); mk_srd(k, 64, 24, 1280); mk_srd(k, 44, 30, WS_SIZE2)
    for z in range(5):
        k(f"buffer_load_dword v{GWD+z}, v{t[1]}, s[64:67], 0 offen offset:{256*z}")
    for r in range(8):
        for z in range(5):
            k(f"buffer_load_dword v{GX+5*r+z}, v{t[1]}, s[32:35], s13 offen offset:{256*z}")
        k("s_add_u32 s13, s13, 1280")
    k("s_waitcnt vmcnt(0)")
    for r in range(8):
        k(f"v_mov_b32 v{ga+r}, 0")
        for z in range(5):
            k(f"v_dot2_f32_bf16 v{ga+r}, v{GX+5*r+z}, v{GWD+z}, v{ga+r}")
    for sh in (8, 4, 2, 1):
        k("s_nop 1")
        for r in range(8):
            k(f"v_add_f32_dpp v{ga+r}, v{ga+r}, v{ga+r} row_ror:{sh} row_mask:0xf bank_mask:0xf")
    k("s_nop 1")
    k(f"v_mov_b32 v{res}, 0")
    for r in range(8):
        k(f"v_readlane_b32 s68, v{ga+r}, 0\nv_readlane_b32 s69, v{ga+r}, 16\nv_readlane_b32 s70, v{ga+r}, 32\nv_readlane_b32 s71, v{ga+r}, 48\ns_nop 1")
        k(f"v_mov_b32 v{t[2]}, s68\nv_add_f32 v{t[2]}, s69, v{t[2]}\nv_add_f32 v{t[2]}, s70, v{t[2]}\nv_add_f32 v{t[2]}, s71, v{t[2]}")
        k(f"v_cmp_eq_u32 vcc, {r}, v1\ns_nop 1\nv_cndmask_b32 v{res}, v{res}, v{t[2]}, vcc")
    k(f"v_cvt_pk_bf16_f32 v{res}, v{res}, v{res}\nv_lshlrev_b32 v{res}, 16, v{res}\nv_mul_f32 v{res}, {NLOG2E:#x}, v{res}\nv_exp_f32 v{res}, v{res}\ns_nop 0")
    k(f"v_add_f32 v{res}, 1.0, v{res}\nv_rcp_f32 v{res}, v{res}\ns_nop 0\nv_cvt_pk_bf16_f32 v{res}, v{res}, v{res}\nv_lshlrev_b32 v{res}, 16, v{res}")
    k(f"s_lshl_b32 s68, s5, 2\ns_add_u32 s68, s68, {WS_G}\nv_lshlrev_b32 v{t[2]}, 2, v1")
    k("s_mov_b64 exec, 0xff")
    k(f"buffer_store_dword v{res}, v{t[2]}, s[44:47], s68 offen")
    k(f"s_branch {END}")


def gen_pf_A1(k, ta, tb):
    k("s_sub_u32 s68, s2, 160\ns_lshr_b32 s68, s68, 3\ns_lshl_b32 s68, s68, 3\ns_add_u32 s68, s68, s3\ns_and_b32 s69, s2, 7")
    SK = k.label("pfs")
    k(f"s_mov_b32 s92, 0\ns_cmp_ge_u32 s68, 80\ns_cbranch_scc1 {SK}\ns_mov_b32 s92, 1")
    mk_srd(k, 88, 76, SIZE["ABre"])
    k("s_and_b32 s70, s69, 1\ns_mul_i32 s70, s70, 409600\ns_mul_i32 s71, s68, 5120\ns_add_u32 s70, s70, s71")
    k("s_bfm_b64 exec, 40, 0")
    k(f"buffer_load_dword v{tb}, v{ta}, s[88:91], s70 offen")
    mk_srd(k, 88, 78, SIZE["ABim"])
    k(f"buffer_load_dword v{tb}, v{ta}, s[88:91], s70 offen")
    k("s_mov_b64 exec, -1")
    mk_srd(k, 88, 72, SIZE["x"])
    k("s_lshr_b32 s70, s69, 1\ns_mul_i32 s70, s70, 655360\ns_lshl_b32 s71, s68, 13\ns_add_u32 s70, s70, s71")
    k(f"buffer_load_dword v{tb}, v{ta}, s[88:91], s70 offen")
    k(f"{SK}:")

def gen_B(k, stamp, store_flags=""):
    k("s_load_dwordx16 s[8:23], s[0:1], 80\ns_load_dwordx4 s[24:27], s[0:1], 160")
    R = Regs(2, 167)
    vc = R.get(); vh = R.get(); vF = R.get()
    P = R.get(6); vldt = R.get()
    ta = R.get(); tb = R.get(); tc = R.get(); td = R.get()
    k(f"v_and_b32 v{vc}, 15, v1\nv_lshrrev_b32 v{vh}, 4, v1\nv_mov_b32 v{vF}, {FLG}")
    k(f"v_lshlrev_b32 v{tc}, 2, v1")
    k(f"s_lshl_b32 s60, s5, 8\ns_lshl_b32 s61, s5, 1\nv_mov_b32 v{td}, s61")
    k("s_waitcnt lgkmcnt(0)")
    for i in range(6): mk_srd(k, 28 + 4*i, 8 + 2*i, SIZE["BAre"])
    mk_srd(k, 52, 20, 1280); mk_srd(k, 56, 26, WS_SIZE2); mk_srd(k, 64, 24, 256)
    k(f"s_mul_i32 s62, s3, {SW}")
    for i in range(6):
        k(f"buffer_load_dword v{P+i}, v{tc}, s[{28+4*i}:{31+4*i}], s60 offen")
    k(f"buffer_load_ushort v{vldt}, v{td}, s[52:55], 0 offen")
    PFB = k.label("pfb"); PFE = k.label("pfe")
    k("s_load_dwordx2 s[72:73], s[0:1], 0\ns_load_dwordx4 s[76:79], s[0:1], 24\ns_load_dwordx4 s[84:87], s[0:1], 40")
    k(f"v_lshlrev_b32 v{ta}, 7, v1")
    k("s_waitcnt lgkmcnt(0)")
    k(f"s_cmp_lt_u32 s2, 160\ns_cbranch_scc1 {PFB}")
    gen_pf_A1(k, ta, tb)
    k(f"s_branch {PFE}")
    k(f"{PFB}:")
    k("s_lshl_b32 s68, s2, 2\ns_add_u32 s68, s68, s3\ns_mul_i32 s70, s68, 1280")
    k("s_mov_b64 exec, 0x3ff")
    mk_srd(k, 88, 84, SIZE["ACre"])
    k(f"buffer_load_dword v{tb}, v{ta}, s[88:91], s70 offen")
    mk_srd(k, 88, 86, SIZE["ACre"])
    k(f"buffer_load_dword v{tb}, v{ta}, s[88:91], s70 offen")
    k("s_mov_b64 exec, -1")
    k(f"{PFE}:")
    stamp(1)
    k("s_mov_b32 m0, s62")
    def rowmap_addr(dst, vals, rowbase, tmp):
        lo_, hi_ = nib64(vals)
        k(f"v_lshlrev_b32 v{tmp}, 2, v{vc}")
        k(f"s_mov_b32 s68, {lo_:#x}\ns_mov_b32 s69, {hi_:#x}")
        k(f"v_lshrrev_b64 v[{dst}:{dst+1}], v{tmp}, s[68:69]")
        k(f"v_and_b32 v{dst}, 15, v{dst}")
        k(f"v_add_u32 v{dst}, {rowbase}, v{dst}")
        k(f"v_mul_u32_u24 v{dst}, {SROW}, v{dst}")
        k(f"v_lshl_add_u32 v{dst}, v{vh}, 4, v{dst}")
        k(f"v_add_u32 v{dst}, s62, v{dst}")
    aF = R.get(2, 2); aR2 = R.get(2, 2); aR3 = R.get(2, 2); aR4 = R.get(2, 2)
    rowmap_addr(aF, list(range(16)), 0, ta)
    rowmap_addr(aR2, [2*(i >> 2) + min(i & 3, 2) for i in range(16)], 0, ta)
    rowmap_addr(aR3, [((i >> 2) + (i & 1)) + 5 * ((i >> 1) & 1) for i in range(16)], 9, ta)
    ev = [0, 0, 1, 2]; od = [0, 1, 1, 2]
    rowmap_addr(aR4, [(od if (i & 1) else ev)[i >> 2] + 3 * ((i >> 1) & 1) for i in range(16)], 0, ta)
    vFp = R.get(); vFt = R.get()
    D = R.get(20, 4)
    XU = R.get(10, 4)
    for i in range(20):
        k(f"v_mov_b32 v{D+i}, 0")
    vdt = R.get()
    WV = k.label("wv"); WE = k.label("we"); W0 = k.label("w0")
    k(f"s_cmp_lt_u32 s2, 160\ns_cbranch_scc1 {WV}")
    k(f"s_cmp_eq_u32 s92, 0\ns_cbranch_scc1 {W0}")
    k(f"s_waitcnt vmcnt(3)\ns_branch {WE}")
    k(f"{W0}:\ns_waitcnt vmcnt(0)\ns_branch {WE}")
    k(f"{WV}:\ns_waitcnt vmcnt(2)")
    k(f"{WE}:")
    k(f"v_lshlrev_b32 v{vdt}, 16, v{vldt}\nv_mul_f32 v{vdt}, {LOG2E:#x}, v{vdt}\nv_exp_f32 v{vdt}, v{vdt}\ns_nop 0")
    k(f"v_cvt_pk_bf16_f32 v{vdt}, v{vdt}, v{vdt}\nv_lshlrev_b32 v{vdt}, 16, v{vdt}")
    stamp(2)
    m_k = R.mark()
    W1, W2, W4, W8, W16, W256, W512, W1024, Cc = [R.get(2, 2) for _ in range(9)]
    ea, eb, fa, fb, ga, gb = [R.get(2, 2) for _ in range(6)]
    aL = R.get(); th = R.get(); u0 = R.get(); u1 = R.get(); u2 = R.get(); u3 = R.get()
    q = [R.get() for _ in range(6)]
    pk = [R.get() for _ in range(6)]
    FF = R.get(16, 4); AF = R.get(32, 4)

    def direct(dst, e):
        if e == 1:
            k(f"v_exp_f32 v{u0}, v{aL}\nv_fract_f32 v{u1}, v{th}")
        else:
            k(f"v_mul_f32 v{u0}, {f2u(float(e)):#x}, v{aL}\nv_mul_f32 v{u1}, {f2u(float(e)):#x}, v{th}")
            k(f"v_exp_f32 v{u0}, v{u0}\nv_fract_f32 v{u1}, v{u1}")
        k(f"v_cos_f32 v{dst}, v{u1}\nv_sin_f32 v{dst+1}, v{u1}\ns_nop 0")
        k(f"v_mul_f32 v{dst}, v{dst}, v{u0}\nv_mul_f32 v{dst+1}, v{dst+1}, v{u0}")
    pkc = [0, 0, 0]
    def emit(val, row, ch=0):
        t_ = pk[2*ch + (pkc[ch] & 1)]; pkc[ch] += 1
        return [f"v_cvt_pk_bf16_f32 v{t_}, v{val}, v{val+1}", f"ds_write_addtid_b32 v{t_} offset:{row*SROW}"]
    def chain(start, step, n, row0, ra, rb, ch=0):
        ins = []; cur = start
        ins += emit(cur, row0, ch)
        for j in range(1, n):
            nxt = ra if cur != ra else rb
            ins += cmul(nxt, cur, step)
            ins += emit(nxt, row0 + j, ch)
            cur = nxt
        return ins, cur
    def mfma_tile(aaddr, rowoff, abuf):
        for ks in range(4):
            k(f"ds_read_b128 v[{AF+abuf+4*ks}:{AF+abuf+4*ks+3}], v{aaddr} offset:{rowoff*SROW + 64*ks}")
    def mfma_do(dreg, abuf):
        for ks in range(4):
            k(f"v_mfma_f32_16x16x32_bf16 v[{dreg}:{dreg+3}], v[{AF+abuf+4*ks}:{AF+abuf+4*ks+3}], v[{FF+4*ks}:{FF+4*ks+3}], v[{dreg}:{dreg+3}]")

    k("s_lshl_b32 s68, s7, 4\ns_sub_u32 s68, 16, s68")
    for i in range(6):
        k(f"v_lshlrev_b32 v{q[i]}, s68, v{P+i}\nv_and_b32 v{q[i]}, {MASKHI}, v{q[i]}")
    Ar, Ai, Br, Bi, Cr, Ci = q
    k(f"v_mul_f32 v{aL}, v{vdt}, v{Ar}\nv_mul_f32 v{th}, v{vdt}, v{Ai}")
    k(f"v_mul_f32 v{aL}, {LOG2E:#x}, v{aL}\nv_mul_f32 v{th}, {INV2PI:#x}, v{th}")
    k(f"v_mul_f32 v{Br}, v{vdt}, v{Br}\nv_mul_f32 v{Bi}, v{vdt}, v{Bi}")
    k(f"v_mul_f32 v{Cc}, v{Cr}, v{Br}\nv_mul_f32 v{Cc+1}, v{Cr}, v{Bi}")
    k(f"v_fma_f32 v{Cc}, -v{Ci}, v{Bi}, v{Cc}\nv_fma_f32 v{Cc+1}, v{Ci}, v{Br}, v{Cc+1}")
    direct(W1, 1); direct(W16, 16); direct(W256, 256)
    k(f"v_sub_f32 v{W16+1}, 0, v{W16+1}")
    k(f"v_mov_b32 v{pk[0]}, 0x3f80\nds_write_addtid_b32 v{pk[0]} offset:0")
    pkc[0] = 1
    cF, _ = chain(W16, W16, 15, 1, fa, fb, 0)
    cT, _ = chain(Cc, W1, 16, 16, ea, eb, 1)
    misc = cmul(W2, W1, W1) + cmul(W4, W2, W2) + cmul(W8, W4, W4) + cmul(W512, W256, W256) + cmul(W1024, W512, W512)
    for ins in interleave(cF, cT, misc): k(ins)
    k("s_waitcnt lgkmcnt(0)")
    for ks in range(4):
        k(f"ds_read_b128 v[{FF+4*ks}:{FF+4*ks+3}], v{aF} offset:{64*ks}")
    mfma_tile(aF, 16, 0)
    for ins in cmul(ga, Cc, W256) + cmul(ea, Cc, W512) + cmul(fa, ea, W256): k(ins)
    k("s_waitcnt lgkmcnt(0)")
    mfma_do(D, 0)
    c2, _ = chain(ga, W2, 9, 0, gb, W16, 0)
    c3a, _ = chain(ea, W4, 5, 9, eb, W1, 1)
    c3b, _ = chain(fa, W4, 5, 14, fb, W512, 2)
    for ins in interleave(c2, c3a, c3b): k(ins)
    k("s_waitcnt lgkmcnt(0)")
    mfma_tile(aR2, 0, 0)
    mfma_tile(aR3, 0, 16)
    for ins in cmul(ea, Cc, W1024) + cmul(eb, ea, W8) + cmul(fa, eb, W8): k(ins)
    stamp(3)
    stamp(4)
    k("s_waitcnt lgkmcnt(0)")
    mfma_do(D+4, 0); mfma_do(D+8, 16)
    chains = []
    for (st, ra, rb, col) in ((ea, ga, W1, 0), (eb, gb, W2, 1), (fa, fb, W4, 2)):
        ins = []; cur = st
        ins += emit(cur, col, col)
        for T in range(1, 4):
            nxt = ra if cur != ra else rb
            ins += cmul(nxt, cur, W256)
            ins += emit(nxt, 3*T + col, col)
            cur = nxt
        chains.append(ins)
    for ins in interleave(*chains): k(ins)
    k("s_waitcnt lgkmcnt(0)")
    mfma_tile(aR4, 0, 0)
    mfma_tile(aR4, 6, 16)
    k("s_waitcnt lgkmcnt(0)")
    mfma_do(D+12, 0); mfma_do(D+16, 16)
    GOT = k.label("bgot"); POLL = k.label("bpoll"); OTH = k.label("both")
    k(f"s_cmp_lg_u32 s3, 0\ns_cbranch_scc1 {OTH}")
    k(f"s_lshr_b32 s68, s5, 6\nv_mov_b32 v{u0}, 0")
    k(f"s_lshl_b32 s68, s68, 9\ns_add_u32 s68, s68, {WS_FL}\nv_and_b32 v{u1}, 31, v1\nv_lshrrev_b32 v{u2}, 3, v{u1}\nv_and_b32 v{u1}, 7, v{u1}\nv_lshlrev_b32 v{u1}, 2, v{u1}\nv_lshl_add_u32 v{u1}, v{u2}, 7, v{u1}")
    k(f"{POLL}:")
    k(f"buffer_load_dword v{XU}, v{u0}, s[64:67], 0 offen sc1\nbuffer_load_dword v{XU+1}, v{u1}, s[56:59], s68 offen sc1\ns_waitcnt vmcnt(0)")
    k(f"v_cmp_eq_u32 s[70:71], v{XU}, v{XU+1}\nv_cmp_ne_u32 vcc, 0, v{XU}\ns_and_b64 s[70:71], s[70:71], vcc")
    k(f"s_cmp_eq_u64 s[70:71], -1\ns_cbranch_scc1 {POLL}_d")
    k(f"s_cmp_eq_u32 s{SB}, 0\ns_cbranch_scc1 {POLL}_d\ns_sub_u32 s{SB}, s{SB}, 1\ns_sleep 8\ns_branch {POLL}")
    k(f"{POLL}_d:")
    set_flag(k, vF, F_XOK, 1, u0)
    k(f"s_branch {GOT}")
    k(f"{OTH}:")
    spin(k, vF, F_XOK, 1, u0, 68, 1, sleep=8)
    k(f"{GOT}:")
    k(f"s_lshl_b32 s68, s5, 12\ns_lshl_b32 s69, s7, 11\ns_add_u32 s68, s68, s69\ns_add_u32 s68, s68, {WS_XR}")
    k(f"v_lshlrev_b32 v{u0}, 4, v1")
    k(f"buffer_load_dwordx4 v[{XU}:{XU+3}], v{u0}, s[56:59], s68 offen sc1\nbuffer_load_dwordx4 v[{XU+4}:{XU+7}], v{u0}, s[56:59], s68 offen offset:1024 sc1")
    k(f"buffer_load_dword v{XU+8}, v{u0}, s[56:59], s68 offen offset:16 sc1\nbuffer_load_dword v{XU+9}, v{u0}, s[56:59], s68 offen offset:1040 sc1")
    exw = u0; exr = u1
    k(f"v_lshl_add_u32 v{exw}, v1, 4, s62")
    k(f"s_xor_b32 s68, s3, 1\ns_mul_i32 s68, s68, {SW}\nv_lshl_add_u32 v{exr}, v1, 4, s68")
    k(f"s_mul_i32 s68, s6, {RU}\ns_add_u32 s63, s63, s68")
    k("s_waitcnt vmcnt(0)")
    k(f"s_cmp_eq_u32 s7, 1\ns_cselect_b32 s68, 63, 64\nv_cmp_eq_u32 vcc, s68, v1\ns_nop 1\nv_cndmask_b32 v{XU+9}, v{XU+9}, 0, vcc" if False else
      f"s_cmp_eq_u32 s7, 1\ns_cselect_b32 s68, 63, 64\nv_mov_b32 v{u2}, 0\nv_cmp_eq_u32 vcc, s68, v1\ns_nop 1\nv_cndmask_b32 v{XU+9}, v{XU+9}, v{u2}, vcc")
    ua = u2
    k(f"s_lshl_b32 s68, s7, 11\ns_add_u32 s68, s68, s63\nv_lshl_add_u32 v{ua}, v1, 4, s68")
    for i in range(2):
        x = XU + 4*i; e = XU + 8 + i
        k(f"ds_write_b128 v{ua}, v[{x}:{x+3}] offset:{V1OFF + 1024*i}")
        o = AF + 4*i
        k(f"v_alignbyte_b32 v{o}, v{x+1}, v{x}, 2\nv_alignbyte_b32 v{o+1}, v{x+2}, v{x+1}, 2\nv_alignbyte_b32 v{o+2}, v{x+3}, v{x+2}, 2\nv_alignbyte_b32 v{o+3}, v{e}, v{x+3}, 2")
        k(f"ds_write_b128 v{ua}, v[{o}:{o+3}] offset:{1024*i}")
    k(f"v_mov_b32 v{ga}, 0\nv_mov_b32 v{ga+1}, 0")
    k(f"s_mul_i32 s68, s7, {V1OFF}\ns_add_u32 s68, s68, s63\nv_lshl_add_u32 v{u3}, v1, 3, s68")
    k("v_cmp_gt_u32 vcc, 56, v1\ns_and_saveexec_b64 s[70:71], vcc")
    k(f"ds_write_b64 v{u3}, v[{ga}:{ga+1}] offset:4096")
    k("s_mov_b64 exec, s[70:71]")
    for tl in range(5):
        k(f"ds_write_b128 v{exw}, v[{D+4*tl}:{D+4*tl+3}] offset:{EX + 1024*tl}")
    k("s_waitcnt lgkmcnt(0)")
    k(f"s_lshl_b32 s68, s3, 2\nv_mov_b32 v{vFp}, {FLG + F_BP}\nv_add_u32 v{vFp}, s68, v{vFp}")
    set_flag(k, vFp, 0, 1, vFt)
    k(f"v_xor_b32 v{vFp}, 4, v{vFp}")
    spin(k, vFp, 0, 1, vFt, 68, 1)
    stamp(5)
    for tl in range(5):
        k(f"ds_read_b128 v[{AF+4*tl}:{AF+4*tl+3}], v{exr} offset:{EX + 1024*tl}")
    wa = u2
    k(f"v_lshlrev_b32 v{wa}, 5, v{vc}\nv_lshl_add_u32 v{wa}, v{vh}, 3, v{wa}\nv_add_u32 v{wa}, s62, v{wa}")
    k(f"v_and_b32 v{u3}, 1, v{vh}\nv_cmp_eq_u32 vcc, 1, v{u3}")
    k("s_waitcnt lgkmcnt(0)")
    for i in range(20):
        k(f"v_add_f32 v{D+i}, v{D+i}, v{AF+i}")
    Z = FF
    k(f"v_cvt_pk_bf16_f32 v{Z}, v{D}, v{D+1}\nv_cvt_pk_bf16_f32 v{Z+1}, v{D+2}, v{D+3}")
    k(f"v_cvt_pk_bf16_f32 v{Z+2}, v{D+4}, v{D+4}\nv_cvt_pk_bf16_f32 v{Z+3}, v{D+5}, v{D+6}")
    for T, (a_, b_) in ((2, (D+8, D+9)), (3, (D+10, D+11))):
        k(f"v_cndmask_b32 v{u3}, v{a_}, v{b_}, vcc")
        k(f"v_cvt_pk_bf16_f32 v{Z+2*T}, v{a_}, v{a_}\nv_cvt_pk_bf16_f32 v{Z+2*T+1}, v{u3}, v{b_}")
    for T, (a_, b_) in ((4, (D+12, D+13)), (5, (D+14, D+15)), (6, (D+16, D+17)), (7, (D+18, D+19))):
        k(f"v_cvt_pk_bf16_f32 v{Z+2*T}, v{a_}, v{b_}\nv_cvt_pk_bf16_f32 v{Z+2*T+1}, v{b_}, v{b_}")
    G1 = k.label("g1"); GE = k.label("ge")
    k(f"v_lshl_add_u32 v{u1}, v1, 2, s62")
    k(f"s_cmp_eq_u32 s7, 1\ns_cbranch_scc1 {G1}")
    for T in range(8):
        k(f"ds_write_b32 v{wa}, v{Z+2*T} offset:{512*T + 60}\nds_write_b32 v{wa}, v{Z+2*T+1} offset:{512*T + 64}")
    k("v_cmp_gt_u32 vcc, 15, v1\ns_and_saveexec_b64 s[70:71], vcc")
    k(f"ds_write_b32 v{u1}, v{ga}")
    k("s_mov_b64 exec, s[70:71]")
    k(f"s_branch {GE}")
    k(f"{G1}:")
    for T in range(8):
        k(f"ds_write_b64 v{wa}, v[{Z+2*T}:{Z+2*T+1}] offset:{512*T + 56}")
    k("v_cmp_gt_u32 vcc, 14, v1\ns_and_saveexec_b64 s[70:71], vcc")
    k(f"ds_write_b32 v{u1}, v{ga}")
    k("s_mov_b64 exec, s[70:71]")
    k(f"{GE}:")
    k("s_waitcnt lgkmcnt(0)")
    k(f"s_lshl_b32 s68, s3, 2\nv_mov_b32 v{vFp}, {FLG + F_BP}\nv_add_u32 v{vFp}, s68, v{vFp}")
    set_flag(k, vFp, 0, 2, vFt)
    k(f"v_xor_b32 v{vFp}, 4, v{vFp}")
    spin(k, vFp, 0, 2, vFt, 68, 1)
    stamp(6)
    R.release(m_k)
    DD = R.get(32, 4)
    A0 = R.get(32, 4); B0 = R.get(32, 4); A1 = R.get(4, 4)
    va = R.get(); vb = R.get(); tq = R.get(); tr = R.get()
    k(f"v_and_b32 v{tq}, 1, v{vc}\nv_mul_u32_u24 v{tq}, {SW-4}, v{tq}\nv_lshl_add_u32 v{tq}, v{vc}, 2, v{tq}\nv_lshl_add_u32 v{tq}, v{vh}, 4, v{tq}")
    k(f"s_and_b32 s68, s3, 6\ns_mul_i32 s68, s68, {SW}\ns_lshl_b32 s69, s7, 8\ns_add_u32 s68, s68, s69\nv_add_u32 v{va}, s68, v{tq}")
    k(f"v_and_b32 v{tq}, 1, v{vc}\nv_mul_u32_u24 v{tq}, {V1OFF}, v{tq}\nv_lshrrev_b32 v{tr}, 1, v{vc}\nv_lshlrev_b32 v{tr}, 6, v{tr}\nv_sub_u32 v{tq}, v{tq}, v{tr}")
    k(f"v_lshl_add_u32 v{tq}, v{vh}, 4, v{tq}\nv_add_u32 v{tq}, {4032 - 3584}, v{tq}\ns_add_u32 s68, s63, s69\nv_add_u32 v{vb}, s68, v{tq}")
    LT = LdsTrack(k)
    def ldA(m, kp):
        off = 64*kp + 512*m
        LT.issue(f"ds_read_b64 v[{A0+4*m}:{A0+4*m+1}], v{va} offset:{off}", ("A", m))
        LT.issue(f"ds_read_b64 v[{A0+4*m+2}:{A0+4*m+3}], v{va} offset:{off+8}", ("A", m))
    def ldB(nu, kp):
        LT.issue(f"ds_read_b128 v[{B0+4*nu}:{B0+4*nu+3}], v{vb} offset:{64*kp + 512*(7-nu)}", ("B", nu))
    for m in range(8):
        ldB(7 - m, 0); ldA(m, 0)
    for i in range(32):
        k(f"v_mov_b32 v{DD+i}, 0")
    for kp in range(4):
        nxt = kp + 1 if kp + 1 < 4 else None
        pendA = {}
        for m in range(8):
            for n in range(7, m - 1, -1):
                LT.need(("A", m), ("B", n - m)) if (m == 0 or n == 7) else None
                k(f"v_mfma_f32_16x16x32_bf16 v[{DD+4*n}:{DD+4*n+3}], v[{A0+4*m}:{A0+4*m+3}], v[{B0+4*(n-m)}:{B0+4*(n-m)+3}], v[{DD+4*n}:{DD+4*n+3}]")
                if n == 7 and nxt is not None: ldB(7 - m, nxt)
            if nxt is not None: ldA(m, nxt)
    stamp(7)
    k(f"v_lshl_add_u32 v{tq}, v1, 4, s62")
    k(f"s_xor_b32 s68, s3, 1\ns_mul_i32 s68, s68, {SW}\nv_lshl_add_u32 v{tr}, v1, 4, s68")
    S1 = k.label("s1"); SE = k.label("se")
    k("s_nop 7")
    k(f"s_cmp_eq_u32 s7, 1\ns_cbranch_scc1 {S1}")
    for n in range(4):
        k(f"ds_write_b128 v{tq}, v[{DD+16+4*n}:{DD+16+4*n+3}] offset:{EX + 1024*n}")
    k(f"s_branch {SE}")
    k(f"{S1}:")
    for n in range(4):
        k(f"ds_write_b128 v{tq}, v[{DD+4*n}:{DD+4*n+3}] offset:{EX + 1024*n}")
    for i in range(16):
        k(f"v_mov_b32 v{DD+i}, v{DD+16+i}")
    k(f"{SE}:")
    k("s_waitcnt lgkmcnt(0)")
    k(f"s_lshl_b32 s68, s3, 2\nv_mov_b32 v{vFp}, {FLG + F_BP}\nv_add_u32 v{vFp}, s68, v{vFp}")
    set_flag(k, vFp, 0, 3, vFt)
    k(f"v_xor_b32 v{vFp}, 4, v{vFp}")
    spin(k, vFp, 0, 3, vFt, 68, 1)
    for n in range(4):
        k(f"ds_read_b128 v[{B0+4*n}:{B0+4*n+3}], v{tr} offset:{EX + 1024*n}")
    k(f"v_lshrrev_b32 v{tq}, 1, v{vc}\nv_lshlrev_b32 v{tq}, 6, v{tq}\nv_lshl_add_u32 v{tq}, v{vh}, 4, v{tq}")
    k(f"s_lshl_b32 s68, s5, 12\ns_lshl_b32 s69, s7, 11\ns_add_u32 s68, s68, s69\ns_add_u32 s68, s68, {WS_YB}")
    k("s_waitcnt lgkmcnt(0)")
    for i in range(16):
        k(f"v_add_f32 v{DD+i}, v{DD+i}, v{B0+i}")
    for n in range(4):
        o = A0 + 4*n
        k("s_nop 1")
        for r in range(4):
            k(f"v_mov_b32_dpp v{A1+r}, v{DD+4*n+r} quad_perm:[1,0,3,2] row_mask:0xf bank_mask:0xf")
        for r in range(4):
            k(f"v_cvt_pk_bf16_f32 v{o+r}, v{DD+4*n+r}, v{A1+r}")
    k(f"v_and_b32 v{tr}, 1, v{vc}\nv_cmp_eq_u32 vcc, 0, v{tr}\ns_and_saveexec_b64 s[70:71], vcc")
    for n in range(4):
        o = A0 + 4*n
        k(f"buffer_store_dwordx4 v[{o}:{o+3}], v{tq}, s[56:59], s68 offen offset:{512*n} {store_flags}")
    k("s_mov_b64 exec, s[70:71]")
    stamp(8)
    return R.hi

def gen_T(k, END, stamp=lambda i: None, dump=None):
    k("s_setprio 3")
    k("s_load_dwordx2 s[8:9], s[0:1], 0\ns_load_dwordx4 s[28:31], s[0:1], 160")
    k("s_mul_i32 s6, s5, 6554\ns_lshr_b32 s6, s6, 16")
    k("s_mul_i32 s7, s6, 10\ns_sub_u32 s7, s5, s7")
    R = Regs(2, 160)
    X = R.get(32, 4); Y = R.get(32, 4); t = [R.get() for _ in range(8)]; vn = R.get()
    k(f"v_lshrrev_b32 v{t[0]}, 3, v1\nv_and_b32 v{t[1]}, 7, v1\nv_mul_u32_u24 v{t[2]}, 1280, v{t[0]}\nv_lshl_add_u32 v{t[2]}, v{t[1]}, 4, v{t[2]}")
    k("s_lshl_b32 s10, s6, 6\ns_mul_i32 s10, s10, 1280\ns_lshl_b32 s11, s7, 7\ns_add_u32 s12, s10, s11")
    k("s_waitcnt lgkmcnt(0)")
    mk_srd(k, 32, 8, SIZE["x"]); mk_srd(k, 44, 30, WS_SIZE2); mk_srd(k, 48, 28, 256)
    for g in range(8):
        k(f"s_add_u32 s13, s12, {g*8*1280}")
        k(f"buffer_load_dwordx4 v[{X+4*g}:{X+4*g+3}], v{t[2]}, s[32:35], s13 offen")
    stamp(1)
    stamp(2)
    NW = k.label("tnw")
    k(f"v_mov_b32 v{t[7]}, 0")
    k(f"s_cmp_lg_u32 s5, 0\ns_cbranch_scc1 {NW}")
    k(f"s_memrealtime s[14:15]\ns_waitcnt lgkmcnt(0)\ns_or_b32 s14, s14, 1\nv_mov_b32 v{vn}, s14")
    k("s_mov_b64 s[16:17], exec\ns_mov_b64 exec, 1")
    k(f"buffer_store_dword v{vn}, v{t[7]}, s[48:51], 0 offen sc1")
    k("s_mov_b64 exec, s[16:17]")
    k(f"{NW}:")
    k(f"v_xor_b32 v{t[3]}, v{t[0]}, v{t[1]}\nv_lshlrev_b32 v{t[3]}, 4, v{t[3]}\nv_lshl_add_u32 v{t[3]}, v{t[0]}, 7, v{t[3]}\nv_add_u32 v{t[3]}, s3, v{t[3]}")
    k("s_waitcnt vmcnt(0)")
    stamp(3)
    k(f"buffer_load_dword v{vn}, v{t[7]}, s[48:51], 0 offen sc1")
    for g in range(8):
        k(f"ds_write_b128 v{t[3]}, v[{X+4*g}:{X+4*g+3}] offset:{1024*g}")
    k("s_waitcnt lgkmcnt(0)")
    k(f"v_and_b32 v{t[0]}, 31, v1\nv_lshrrev_b32 v{t[1]}, 5, v1\nv_lshrrev_b32 v{t[2]}, 2, v{t[0]}\nv_and_b32 v{t[4]}, 3, v{t[0]}")
    k(f"v_lshlrev_b32 v{t[5]}, 12, v{t[1]}\nv_lshl_add_u32 v{t[5]}, v{t[4]}, 2, v{t[5]}\nv_add_u32 v{t[5]}, s3, v{t[5]}")
    for e7 in range(8):
        k(f"v_xor_b32 v{t[6]}, {e7}, v{t[2]}\nv_lshl_add_u32 v{t[6]}, v{t[6]}, 4, v{t[5]}")
        for e in range(e7, 32, 8):
            k(f"ds_read_b32 v{X+e}, v{t[6]} offset:{128*e}")
        if e7 == 3: k("s_waitcnt lgkmcnt(0)")
    k("s_mov_b32 s14, 0x05040100\ns_mov_b32 s15, 0x07060302")
    k(f"v_sub_u32 v{t[1]}, 1, v{t[1]}\nv_lshlrev_b32 v{t[1]}, 2, v{t[1]}")
    k("s_waitcnt lgkmcnt(0)")
    for half, sel in ((0, "s14"), (1, "s15")):
        k(f"v_lshlrev_b32 v{t[2]}, 1, v{t[0]}\nv_add_u32 v{t[2]}, {half}, v{t[2]}\nv_and_b32 v{t[4]}, 7, v{t[2]}\nv_lshlrev_b32 v{t[2]}, 7, v{t[2]}\nv_add_u32 v{t[2]}, s3, v{t[2]}")
        for q in range(4):
            o = Y + 16*half + 4*q
            for dw in range(4):
                i0 = 2*dw
                k(f"v_perm_b32 v{o+dw}, v{X + 31 - 8*q - i0 - 1}, v{X + 31 - 8*q - i0}, {sel}")
            k(f"v_add_u32 v{t[5]}, {q}, v{t[1]}\nv_xor_b32 v{t[5]}, v{t[5]}, v{t[4]}\nv_lshl_add_u32 v{t[5]}, v{t[5]}, 4, v{t[2]}")
            k(f"ds_write_b128 v{t[5]}, v[{o}:{o+3}]")
    k("s_waitcnt lgkmcnt(0)")
    k(f"v_lshrrev_b32 v{t[0]}, 3, v1\nv_and_b32 v{t[1]}, 7, v1\nv_xor_b32 v{t[2]}, v{t[0]}, v{t[1]}\nv_lshlrev_b32 v{t[2]}, 4, v{t[2]}\nv_lshl_add_u32 v{t[2]}, v{t[0]}, 7, v{t[2]}\nv_add_u32 v{t[2]}, s3, v{t[2]}")
    for g in range(8):
        k(f"ds_read_b128 v[{X+4*g}:{X+4*g+3}], v{t[2]} offset:{1024*g}")
    k(f"v_lshlrev_b32 v{t[3]}, 12, v{t[0]}\nv_lshl_add_u32 v{t[3]}, v{t[1]}, 4, v{t[3]}")
    k(f"s_lshl_b32 s10, s7, 18\ns_sub_u32 s11, 31, s6\ns_lshl_b32 s11, s11, 7\ns_add_u32 s10, s10, s11\ns_add_u32 s10, s10, {WS_XR}")
    k("s_waitcnt lgkmcnt(0)")
    for g in range(8):
        k(f"s_add_u32 s13, s10, {g*8*4096}")
        k(f"buffer_store_dwordx4 v[{X+4*g}:{X+4*g+3}], v{t[3]}, s[44:47], s13 offen sc1")
    stamp(4)
    k("s_waitcnt vmcnt(0)")
    stamp(5)
    NP = k.label("tnp"); NG = k.label("tng")
    k("s_mov_b32 s18, 0x100000")
    k(f"{NP}:")
    k(f"v_readfirstlane_b32 s14, v{vn}\ns_nop 1\ns_cmp_lg_u32 s14, 0\ns_cbranch_scc1 {NG}")
    k(f"s_sleep 4\nbuffer_load_dword v{vn}, v{t[7]}, s[48:51], 0 offen sc1\ns_waitcnt vmcnt(0)")
    k(f"s_sub_u32 s18, s18, 1\ns_cmp_lg_u32 s18, 0\ns_cbranch_scc1 {NP}")
    k(f"{NG}:")
    k(f"s_lshl_b32 s10, s7, 9\ns_lshr_b32 s11, s6, 3\ns_lshl_b32 s11, s11, 7\ns_add_u32 s10, s10, s11\ns_and_b32 s11, s6, 7\ns_lshl_b32 s11, s11, 2\ns_add_u32 s10, s10, s11\ns_add_u32 s10, s10, {WS_FL}")
    k(f"v_mov_b32 v{vn}, s14")
    k("s_mov_b64 exec, 1")
    k(f"buffer_store_dword v{vn}, v{t[7]}, s[44:47], s10 offen sc1")
    k("s_mov_b64 exec, -1")
    if dump: dump()


def gen_PF(k, END):
    k("s_load_dwordx16 s[8:23], s[0:1], 0")
    k("v_lshlrev_b32 v2, 7, v1")
    k("s_waitcnt lgkmcnt(0)")
    mk_srd(k, 32, 8, SIZE["x"]); mk_srd(k, 36, 14, SIZE["ABre"]); mk_srd(k, 40, 16, SIZE["ABim"]); mk_srd(k, 44, 18, SIZE["ACre"]); mk_srd(k, 48, 20, SIZE["ACim"])
    SK = k.label("pfs")
    k(f"s_cmp_ge_u32 s5, 40\ns_cbranch_scc1 {SK}")
    k("s_and_b32 s24, s6, 1\ns_mul_i32 s24, s24, 409600\ns_mul_i32 s25, s5, 10240\ns_add_u32 s24, s24, s25")
    k("buffer_load_dword v6, v2, s[36:39], s24 offen\nbuffer_load_dword v7, v2, s[40:43], s24 offen")
    k("s_lshr_b32 s26, s6, 1\ns_mul_i32 s26, s26, 655360\ns_lshl_b32 s25, s5, 14\ns_add_u32 s26, s26, s25")
    k("buffer_load_dword v4, v2, s[32:35], s26 offen\ns_add_u32 s26, s26, 8192\nbuffer_load_dword v5, v2, s[32:35], s26 offen")
    k("s_add_u32 s24, s24, 8192\ns_mov_b64 exec, 0xffff")
    k("buffer_load_dword v8, v2, s[36:39], s24 offen\nbuffer_load_dword v9, v2, s[40:43], s24 offen")
    k(f"{SK}:")
    k("s_mov_b64 exec, 0x1ffff\ns_mul_i32 s24, s7, 2176")
    k("buffer_load_dword v10, v2, s[44:47], s24 offen\nbuffer_load_dword v11, v2, s[48:51], s24 offen")
    k("s_mov_b64 exec, -1")
    k("s_barrier")
    k(f"s_branch {END}")

def gen_k1(dbg=False, store_flags="", noB=False):
    k = Kern("k1_kernel", 256, 768, lds=LDS1, vgpr=168, sgpr=100)
    END = k.name + "_end"
    st = Stamper(k, dbg)
    k(f"s_cmp_ge_u32 s2, 256\ns_cbranch_scc1 {END}")
    st.start()
    wave_id(k, 4, 1)
    k(f"v_and_b32 v1, 63, v0\ns_mov_b32 s{SB}, 0x200000")
    ZS = k.label("zs")
    k(f"s_cmp_lg_u32 s4, 8\ns_cbranch_scc1 {ZS}")
    k(f"v_mov_b32 v2, 0\nv_lshlrev_b32 v3, 2, v1\nv_add_u32 v3, {FLG}, v3\nds_write_b32 v3, v2\ns_waitcnt lgkmcnt(0)")
    k(f"{ZS}:")
    k("s_barrier")
    BBL = k.label("bb"); BROLE = k.label("brole"); AP = k.label("ap"); PW = k.label("pw"); ZB = k.label("zb"); AA = k.label("aa")
    k(f"s_cmp_ge_u32 s2, 160\ns_cbranch_scc1 {BBL}")
    k(f"s_cmp_lt_u32 s4, 4\ns_cbranch_scc1 {AA}\ns_cmp_ge_u32 s4, 8\ns_cbranch_scc1 {AA}")
    k(f"s_sub_u32 s3, s4, 4\ns_lshr_b32 s6, s3, 1\ns_lshl_b32 s5, s2, 1\ns_add_u32 s5, s5, s6\ns_and_b32 s7, s3, 1\ns_mov_b32 s63, {UB_AB}\ns_branch {BROLE}")
    k(f"{AA}:")
    k("s_load_dwordx16 s[8:23], s[0:1], 0\ns_load_dwordx4 s[28:31], s[0:1], 160")
    k("s_and_b32 s68, s2, 7\ns_lshr_b32 s69, s2, 3\ns_mul_i32 s70, s69, 52\ns_lshr_b32 s70, s70, 8")
    k("s_mul_i32 s71, s70, 5\ns_sub_u32 s71, s69, s71")
    k("s_lshr_b32 s5, s68, 1\ns_lshl_b32 s5, s5, 2\ns_add_u32 s5, s5, s70")
    k("s_and_b32 s6, s68, 1\ns_mul_i32 s6, s6, 5\ns_add_u32 s6, s6, s71")
    k(f"s_sub_u32 s7, s4, 8\ns_cmp_ge_u32 s4, 8\ns_cbranch_scc1 {AP}")
    hiA = gen_Acons(k, st, store_flags)
    st.dump(44, END, 4, wave=0)
    k(f"s_branch {END}")
    k(f"{AP}:")
    def pdump():
        CONT = k.label("pc")
        mk_srd(k, 44, 30, WS_SIZE2)
        k("s_add_u32 s2, s2, 768")
        st.dump(44, CONT, 4, wave=8)
        k(f"{CONT}:")
    hiP = gen_Aprod(k, END, st, pdump if dbg else None)
    k(f"{BBL}:")
    k(f"s_cmp_ge_u32 s4, 8\ns_cbranch_scc1 {PW}")
    NB = k.label("nb")
    k(f"s_cmp_ge_u32 s2, 240\ns_cbranch_scc1 {NB}")
    k(f"s_mov_b32 s3, s4\ns_lshr_b32 s6, s3, 1\ns_sub_u32 s5, s2, 160\ns_lshl_b32 s5, s5, 2\ns_add_u32 s5, s5, s6\ns_add_u32 s5, s5, 320\ns_and_b32 s7, s3, 1\ns_mov_b32 s63, {UB_BB}")
    k(f"{BROLE}:")
    if noB: k(f"s_branch {END}")
    st.n = 0
    hiB = gen_B(k, st, store_flags)
    st.dumpB(56, END) if dbg else None
    k(f"s_branch {END}")
    k(f"{NB}:")
    k("s_load_dwordx2 s[72:73], s[0:1], 0\ns_load_dwordx4 s[76:79], s[0:1], 24\ns_mov_b32 s3, s4\nv_lshlrev_b32 v2, 7, v1\ns_waitcnt lgkmcnt(0)")
    gen_pf_A1(k, 2, 3)
    k(f"s_branch {END}")
    k(f"{PW}:")
    k("s_sub_u32 s68, s2, 160\ns_lshl_b32 s97, s68, 2\ns_sub_u32 s69, s4, 8\ns_add_u32 s97, s97, s69")
    GT = k.label("gt"); NT = k.label("nt")
    k(f"s_cmp_ge_u32 s97, 320\ns_cbranch_scc1 {NT}")
    k(f"s_mov_b32 s5, s97\ns_lshl_b32 s3, s69, 13\ns_add_u32 s3, s3, {TSCB}")
    def tdump():
        CONT = k.label("tc")
        k("s_add_u32 s2, s2, 512")
        st.dump(44, CONT, 4, wave=8)
        k("s_mov_b64 exec, -1")
        k(f"{CONT}:")
        k("s_sub_u32 s2, s2, 512")
    gen_T(k, END, st, tdump if dbg else None)
    k(f"s_branch {GT}")
    k(f"{NT}:")
    k(f"{GT}:")
    k(f"s_cmp_ge_u32 s97, 256\ns_cbranch_scc1 {END}")
    k("s_lshl_b32 s5, s97, 3")
    gen_gate(k, END)
    k(f"{END}:\ns_endpgm")
    print("vgprs A", hiA, "P", hiP, "B", hiB)
    return k
```

```python
import sys
from common import *
from k1u import gen_k1
import k2 as k2mod

if __name__ == "__main__":
    out = sys.argv[1]
    mode = sys.argv[2] if len(sys.argv) > 2 else "full"
    dbg = "dbg" in sys.argv
    sf = ""
    for a in sys.argv:
        if a.startswith("sf="): sf = a[3:].replace("_", " ")
    k1 = gen_k1(dbg, sf, "noB" in sys.argv, "prof" in sys.argv)
    if mode == "k1":
        build([k1], [k1], out)
    else:
        k2 = k2mod.gen_k2(dbg, "prof" in sys.argv)
        ks = [k1, k2]; ls = [k1, k2]
        n_empty = 0
        for a in sys.argv:
            if a.startswith("empty="): n_empty = int(a[6:])
        if n_empty:
            e = Kern("e_kernel", 256, 64, vgpr=8, sgpr=16)
            e("s_endpgm")
            ks.append(e); ls = ls + [e] * n_empty
        build(ks, ls, out)
```

```python
from common import *
from kb import cmul, interleave, nib64
from ka import direct_pow, cfma

SROW = 288; SW = 9344; EX = 4224; RU = 9216; V1OFF = 4576
UB_AB = 4 * SW
UB_BB = 8 * SW
RB = 56320
UN = 16384
FLG = RB + 6 * UN
F_FULL = 0; F_FX = 16; F_FB = 32; F_TAG = 48; F_XOK = 52; F_BP = 64; F_HD = 96
EXA = FLG + 256
DUMMY = EXA + 2048
LDS1 = DUMMY + 512
TSCB = 112640
SB = 98

def set_flag(k, vF, off, val, vt):
    k(f"s_mov_b64 exec, 1\nv_mov_b32 v{vt}, {val}\nds_write_b32 v{vF}, v{vt} offset:{off}\ns_mov_b64 exec, -1")

def spin(k, vF, off, val, vt, st, nw=1, sleep=1):
    L = k.label("sp"); D = k.label("spd")
    k(f"{L}:")
    if nw == 1: k(f"ds_read_b32 v{vt}, v{vF} offset:{off}")
    elif nw == 2: k(f"ds_read_b64 v[{vt}:{vt+1}], v{vF} offset:{off}")
    else: k(f"ds_read_b128 v[{vt}:{vt+3}], v{vF} offset:{off}")
    k("s_waitcnt lgkmcnt(0)")
    if nw == 2: k(f"v_min_u32 v{vt}, v{vt}, v{vt+1}")
    if nw == 4: k(f"v_min_u32 v{vt}, v{vt}, v{vt+1}\nv_min_u32 v{vt+2}, v{vt+2}, v{vt+3}\nv_min_u32 v{vt}, v{vt}, v{vt+2}")
    k(f"s_nop 0\nv_readfirstlane_b32 s{st}, v{vt}\ns_nop 1\ns_cmp_ge_u32 s{st}, {val}\ns_cbranch_scc1 {D}")
    k(f"s_cmp_eq_u32 s{SB}, 0\ns_cbranch_scc1 {D}\ns_sub_u32 s{SB}, s{SB}, 1\ns_sleep {sleep}\ns_branch {L}")
    k(f"{D}:")

import os
PRIO_C = int(os.environ.get("PRIO_C", 2)); PRIO_P = int(os.environ.get("PRIO_P", 3)); PSLEEP = int(os.environ.get("PSLEEP", 0))
def gen_Acons(k, stamp, store_flags):
    k(f"s_setprio {PRIO_C}")
    R = Regs(2, 167)
    vc = R.get(); vh = R.get(); vF = R.get()
    accR = R.get(32, 4); accI = R.get(32, 4)
    aA = R.get(); aA1 = R.get(); aB = R.get(); aB1 = R.get()
    t = [R.get() for _ in range(5)]
    L1 = R.get(2, 2); L16 = R.get(2, 2); L32 = R.get(2, 2); Lh = R.get(2, 2); LW = R.get(8, 2); CO = R.get(2, 2)
    aL = R.get(); th = R.get(); prm = R.get(4, 4); vtag = prm + 1; fl = prm + 2; fl4 = prm
    A = R.get(32, 4); BB = [R.get(8, 4) for _ in range(3)]
    k(f"v_and_b32 v{vc}, 15, v1\nv_lshrrev_b32 v{vh}, 4, v1\nv_mov_b32 v{vF}, {FLG}")
    k("s_lshl_b32 s74, s6, 2\ns_add_u32 s74, s74, s4\ns_lshl_b32 s74, s74, 4")
    k("s_lshl_b32 s75, s4, 12")
    k(f"v_add_u32 v{t[0]}, s74, v{vc}\nv_lshlrev_b32 v{t[0]}, 1, v{t[0]}")
    k("s_waitcnt lgkmcnt(0)")
    mk_srd(k, 52, 10, 1280); mk_srd(k, 56, 12, 1280); mk_srd(k, 60, 22, 1280); mk_srd(k, 44, 30, WS_SIZE2)
    k(f"buffer_load_ushort v{prm}, v{t[0]}, s[52:55], 0 offen\nbuffer_load_ushort v{prm+1}, v{t[0]}, s[56:59], 0 offen\nbuffer_load_ushort v{prm+2}, v{t[0]}, s[60:63], 0 offen")
    k(f"v_lshrrev_b32 v{t[0]}, 2, v{vc}\nv_and_b32 v{t[1]}, 1, v{vc}\nv_lshl_add_u32 v{t[2]}, v{t[0]}, 1, v{t[1]}")
    k(f"v_lshlrev_b32 v{t[3]}, 4, v{t[2]}")
    k(f"v_lshrrev_b32 v{t[4]}, 1, v{vc}\nv_and_b32 v{t[4]}, 1, v{t[4]}\nv_add_u32 v{t[3]}, v{t[3]}, v{t[4]}")
    k(f"v_xor_b32 v{t[2]}, v{t[2]}, v{vh}\nv_lshlrev_b32 v{t[2]}, 4, v{t[2]}\nv_lshl_add_u32 v{aA}, v{t[3]}, 7, v{t[2]}")
    k(f"v_add_u32 v{aA}, {RB}, v{aA}\nv_xor_b32 v{aA1}, 64, v{aA}")
    k(f"v_lshrrev_b32 v{t[2]}, 1, v{vc}\nv_xor_b32 v{t[2]}, v{t[2]}, v{vh}\nv_lshlrev_b32 v{t[2]}, 4, v{t[2]}\nv_lshl_add_u32 v{aB}, v{vc}, 7, v{t[2]}")
    k(f"v_add_u32 v{aB}, s75, v{aB}\nv_add_u32 v{aB}, {RB + 3*UN}, v{aB}\nv_xor_b32 v{aB1}, 64, v{aB}")
    for i in range(32):
        k(f"v_mov_b32 v{accR+i}, 0\nv_mov_b32 v{accI+i}, 0")
    k("s_waitcnt vmcnt(0)")
    k(f"v_lshlrev_b32 v{prm}, 16, v{prm}\nv_lshlrev_b32 v{prm+1}, 16, v{prm+1}\nv_lshlrev_b32 v{prm+2}, 16, v{prm+2}")
    k(f"v_mul_f32 v{prm+2}, {LOG2E:#x}, v{prm+2}\nv_exp_f32 v{prm+2}, v{prm+2}\ns_nop 0\nv_cvt_pk_bf16_f32 v{prm+2}, v{prm+2}, v{prm+2}\nv_lshlrev_b32 v{prm+2}, 16, v{prm+2}")
    k(f"v_mul_f32 v{aL}, v{prm+2}, v{prm}\nv_mul_f32 v{th}, v{prm+2}, v{prm+1}\nv_mul_f32 v{aL}, {LOG2E:#x}, v{aL}\nv_mul_f32 v{th}, {INV2PI:#x}, v{th}")
    direct_pow(k, L1, None, aL, th, t[0], t[1])
    k(f"v_add_f32 v{t[2]}, -1.0, v{L1}\nv_mul_f32 v{t[3]}, v{prm}, v{prm}\nv_fmac_f32 v{t[3]}, v{prm+1}, v{prm+1}\nv_rcp_f32 v{t[3]}, v{t[3]}")
    k(f"v_mul_f32 v{CO}, v{t[2]}, v{prm}\nv_fmac_f32 v{CO}, v{L1+1}, v{prm+1}\nv_mul_f32 v{CO+1}, v{L1+1}, v{prm}\nv_fma_f32 v{CO+1}, -v{t[2]}, v{prm+1}, v{CO+1}")
    k(f"v_add_f32 v{t[3]}, v{t[3]}, v{t[3]}\nv_mul_f32 v{CO}, v{CO}, v{t[3]}\nv_mul_f32 v{CO+1}, v{CO+1}, v{t[3]}")
    direct_pow(k, L16, 16, aL, th, t[0], t[1])
    direct_pow(k, L32, 32, aL, th, t[0], t[1])
    k(f"v_cvt_f32_u32 v{t[2]}, v{vh}\nv_mul_f32 v{t[2]}, {f2u(32.0):#x}, v{t[2]}")
    direct_pow(k, Lh, t[2], aL, th, t[0], t[1], True)
    lam_code = []
    class KK:
        def __call__(self, txt): lam_code.extend([l for l in txt.split("\n") if l.strip()])
    kk = KK()
    for z in range(4):
        kk(f"s_sub_i32 s23, s5, {1 + 4*z}\nv_sub_u32 v{t[2]}, s23, v{vh}\nv_max_i32 v{t[2]}, 0, v{t[2]}\nv_cvt_f32_i32 v{t[2]}, v{t[2]}\nv_mul_f32 v{t[2]}, {f2u(128.0):#x}, v{t[2]}")
        direct_pow(kk, LW + 2*z, t[2], aL, th, t[0], t[1], True)
    lam_left = lam_code[:]
    def lam_take(n):
        out = lam_left[:n]; del lam_left[:n]
        return "\n".join(out) if out else None
    stamp(1)
    spin(k, vF, F_FULL, 1, fl4, 68, 4)
    stamp(2)
    LT = LdsTrack(k)
    def rdBt(q):
        s_, ks = q >> 1, q & 1
        buf = BB[q % 3]; rb = aB1 if ks else aB; bo = (s_ % 3) * UN
        LT.issue(f"ds_read_b128 v[{buf}:{buf+3}], v{rb} offset:{bo}", ("B", q))
        LT.issue(f"ds_read_b128 v[{buf+4}:{buf+7}], v{rb} offset:{bo+2048}", ("B", q))
    def rdAt(m, q):
        ra = aA1 if (q & 1) else aA
        LT.issue(f"ds_read_b128 v[{A+4*m}:{A+4*m+3}], v{ra} offset:{((q >> 1) % 3)*UN + 256*m}", ("A", m))
    def mm(m, q):
        B = BB[q % 3]
        LT.need(("A", m), ("B", q))
        k(f"v_mfma_f32_16x16x32_bf16 v[{accR+4*m}:{accR+4*m+3}], v[{A+4*m}:{A+4*m+3}], v[{B}:{B+3}], v[{accR+4*m}:{accR+4*m+3}]")
        k(f"v_mfma_f32_16x16x32_bf16 v[{accI+4*m}:{accI+4*m+3}], v[{A+4*m}:{A+4*m+3}], v[{B+4}:{B+7}], v[{accI+4*m}:{accI+4*m+3}]")
    vFw = t[3]; vcnt = t[4]
    k(f"s_lshl_b32 s68, s4, 2\ns_add_u32 s68, s68, {FLG}\ns_mov_b32 s69, {DUMMY}")
    k(f"v_lshl_add_u32 v{vFw}, v1, 2, s69\nv_mov_b32 v{vcnt}, s68\nv_cmp_eq_u32 vcc, 0, v1\ns_nop 1\nv_cndmask_b32 v{vFw}, v{vFw}, v{vcnt}, vcc")
    k(f"v_mov_b32 v{vcnt}, 0")
    vFr = fl4
    k(f"v_and_b32 v{vFr}, 3, v1\nv_lshlrev_b32 v{vFr}, 2, v{vFr}\nv_add_u32 v{vFr}, {FLG + F_FULL}, v{vFr}")
    vFv = fl4 + 1
    def flagw(off):
        LT.issue(f"ds_write_b32 v{vFw}, v{vcnt} offset:{off}", ("W", off))
    rdBt(0); rdBt(1)
    for m in range(8): rdAt(m, 0)
    for s_ in range(10):
        q0 = 2*s_
        if s_ == 4: stamp(9)
        for m in range(8):
            mm(m, q0)
            rdAt(m, q0 + 1)
            if m == 0:
                k(f"v_add_u32 v{vcnt}, 1, v{vcnt}")
                if s_ + 3 <= 9:
                    LT.need(("B", q0 + 1))
                    flagw(F_FB)
            if m == 5 and s_ < 9:
                LT.issue(f"ds_read_b32 v{vFv}, v{vFr}", ("F", s_))
            f = lam_take(2)
            if f: k(f)
        if s_ == 4: stamp(10)
        for m in range(8):
            mm(m, q0 + 1)
            if s_ < 9:
                if m == 0:
                    if s_ == 4: stamp(11)
                    OK_ = k.label("ok"); SP_ = k.label("fs")
                    LT.need(("F", s_))
                    k(f"v_cmp_le_u32 vcc, {s_+2}, v{vFv}\ns_cmp_eq_u64 vcc, -1\ns_cbranch_scc1 {OK_}")
                    k(f"{SP_}:")
                    k(f"ds_read_b32 v{vFv}, v{vFr}\ns_waitcnt lgkmcnt(0)\nv_cmp_le_u32 vcc, {s_+2}, v{vFv}\ns_cmp_eq_u64 vcc, -1\ns_cbranch_scc1 {OK_}")
                    k(f"s_cmp_eq_u32 s{SB}, 0\ns_cbranch_scc1 {OK_}\ns_sub_u32 s{SB}, s{SB}, 1\ns_branch {SP_}")
                    k(f"{OK_}:")
                    if s_ == 1: stamp(3)
                    if s_ == 4: stamp(4)
                rdAt(m, q0 + 2)
                if m == 1: rdBt(q0 + 2)
                if m == 3: rdBt(q0 + 3)
            if m == 2 and s_ + 3 <= 9:
                LT.need(("A", 7))
                flagw(F_FX)
            f = lam_take(2)
            if f: k(f)
        if s_ == 4: stamp(12)
    assert not lam_left, len(lam_left)
    LT.all_done()
    k(f"v_mov_b32 v{vcnt}, 10")
    flagw(F_FX)
    stamp(5)
    T = Regs(A, 167)
    Sa = T.get(4, 2); Sb = T.get(4, 2); tt = T.get(4, 2)
    LAM = f"v[{L1}:{L1+1}]"
    def step(dst, src, zr, zi, lam=LAM):
        k(f"v_pk_fma_f32 v[{tt}:{tt+1}], {lam}, v[{src}:{src+1}], v[{zr}:{zr+1}] op_sel:[0,0,0] op_sel_hi:[0,1,1]")
        k(f"v_pk_fma_f32 v[{tt+2}:{tt+3}], {lam}, v[{src+2}:{src+3}], v[{zi}:{zi+1}] op_sel:[0,0,0] op_sel_hi:[0,1,1]")
        k(f"v_pk_fma_f32 v[{dst}:{dst+1}], {lam}, v[{src+2}:{src+3}], v[{tt}:{tt+1}] op_sel:[1,0,0] op_sel_hi:[1,1,1] neg_lo:[1,0,0] neg_hi:[1,0,0]")
        k(f"v_pk_fma_f32 v[{dst+2}:{dst+3}], {lam}, v[{src}:{src+1}], v[{tt+2}:{tt+3}] op_sel:[1,0,0] op_sel_hi:[1,1,1]")
    k("s_nop 7")
    k(f"v_mov_b32 v{Sa}, v{accR}\nv_mov_b32 v{Sa+1}, v{accR+1}\nv_mov_b32 v{Sa+2}, v{accI}\nv_mov_b32 v{Sa+3}, v{accI+1}")
    cur, nxt = Sa, Sb
    for s_ in range(1, 16):
        m = s_ >> 1; pr = s_ & 1
        step(nxt, cur, accR + 4*m + 2*pr, accI + 4*m + 2*pr)
        cur, nxt = nxt, cur
    AG = T.get(4, 2)
    for i in range(4): k(f"v_mov_b32 v{AG+i}, v{cur+i}")
    SC16 = T.get(16, 4)
    G = SC16
    cfma(k, G, G+1, L16, L16+1, AG, AG+2, AG+1, AG+3)
    ex = T.get(); exr = T.get()
    k(f"s_lshl_b32 s68, s4, 9\ns_add_u32 s68, s68, {EXA}\nv_lshl_add_u32 v{ex}, v1, 3, s68\nv_lshl_add_u32 v{exr}, v{vc}, 3, s68")
    k(f"ds_write_b64 v{ex}, v[{G}:{G+1}]\nds_read_b32 v{vtag}, v{vF} offset:{F_TAG}\ns_waitcnt lgkmcnt(0)")
    GG = T.get(8, 2)
    for h in range(4): k(f"ds_read_b64 v[{GG+2*h}:{GG+2*h+1}], v{exr} offset:{128*h}")
    TGO = k.label("tgo")
    k(f"v_readfirstlane_b32 s68, v{vtag}\ns_nop 1\ns_cmp_lg_u32 s68, 0\ns_cbranch_scc1 {TGO}")
    spin(k, vF, F_TAG, 1, vtag, 68, 1)
    k(f"{TGO}:")
    k("s_waitcnt lgkmcnt(0)")
    P2 = SC16 + 2; P3 = SC16 + 4; TOT = SC16 + 8; PEX = T.get(2, 2)
    cfma(k, P2, P2+1, L32, L32+1, GG, GG+1, GG+2, GG+3)
    cfma(k, P3, P3+1, L32, L32+1, P2, P2+1, GG+4, GG+5)
    cfma(k, TOT, TOT+2, L32, L32+1, P3, P3+1, GG+6, GG+7)
    k(f"v_mov_b32 v{TOT+1}, v{vtag}\nv_mov_b32 v{TOT+3}, v{vtag}")
    pa = T.get()
    k(f"v_add_u32 v{pa}, s74, v{vc}\nv_lshlrev_b32 v{pa}, 4, v{pa}")
    k(f"s_mul_i32 s68, s5, {640*16}\ns_add_u32 s68, s68, {WS_AGG}")
    k("s_mov_b64 exec, 0xffff")
    k(f"buffer_store_dwordx4 v[{TOT}:{TOT+3}], v{pa}, s[44:47], s68 offen sc1")
    k("s_mov_b64 exec, -1")
    k(f"v_mov_b32 v{PEX}, 0\nv_mov_b32 v{PEX+1}, 0")
    for h, src in ((1, GG), (2, P2), (3, P3)):
        k(f"v_cmp_eq_u32 vcc, {h}, v{vh}\ns_nop 1\nv_cndmask_b32 v{PEX}, v{PEX}, v{src}, vcc\nv_cndmask_b32 v{PEX+1}, v{PEX+1}, v{src+1}, vcc")
    stamp(6)
    COP = f"v[{CO}:{CO+1}]"
    hh = SC16 + 12
    for m in range(8):
        for pr in range(2):
            zr = accR + 4*m + 2*pr; zi = accI + 4*m + 2*pr
            k(f"v_pk_mul_f32 v[{hh}:{hh+1}], {COP}, v[{zr}:{zr+1}] op_sel:[0,0] op_sel_hi:[0,1]")
            k(f"v_pk_mul_f32 v[{hh+2}:{hh+3}], {COP}, v[{zi}:{zi+1}] op_sel:[0,0] op_sel_hi:[0,1] neg_lo:[1,0] neg_hi:[1,0]")
            k(f"v_pk_fma_f32 v[{hh+2}:{hh+3}], {COP}, v[{zr}:{zr+1}], v[{hh+2}:{hh+3}] op_sel:[1,0,0] op_sel_hi:[1,1,1] neg_lo:[1,0,0] neg_hi:[1,0,0]")
            k(f"v_pk_fma_f32 v[{zr}:{zr+1}], {COP}, v[{zi}:{zi+1}], v[{hh}:{hh+1}] op_sel:[1,0,0] op_sel_hi:[1,1,1] neg_lo:[1,0,0] neg_hi:[1,0,0]")
            k(f"v_mov_b32 v{zi}, v{hh+2}\nv_mov_b32 v{zi+1}, v{hh+3}")
    LC = T.get(2, 2)
    k(f"v_mov_b32 v{LC}, v{L1}\nv_sub_f32 v{LC+1}, 0, v{L1+1}")
    CAR = T.get(2, 2); m_lb = T.mark(); LB = SC16; la = T.get()
    k(f"v_mov_b32 v{CAR}, 0\nv_mov_b32 v{CAR+1}, 0")
    NOLB = k.label("nolb")
    k(f"s_cmp_eq_u32 s5, 0\ns_cbranch_scc1 {NOLB}")
    k(f"v_mul_u32_u24 v{la}, {640*16}, v{vh}\nv_add_u32 v{la}, v{la}, v{pa}")
    POLL = k.label("poll"); GOT = k.label("got")
    k(f"{POLL}:")
    for z in range(4):
        k(f"s_mov_b32 s68, {WS_AGG + 4*z*640*16}")
        k(f"buffer_load_dwordx4 v[{LB+4*z}:{LB+4*z+3}], v{la}, s[44:47], s68 offen sc1")
    k("s_waitcnt vmcnt(0)")
    k("s_mov_b64 s[14:15], -1")
    for z in range(4):
        k(f"v_cmp_eq_u32 s[16:17], v{LB+4*z+1}, v{vtag}\nv_cmp_eq_u32 s[18:19], v{LB+4*z+3}, v{vtag}")
        k(f"v_add_u32 v{t[0]}, {4*z}, v{vh}\nv_cmp_le_u32 s[20:21], s5, v{t[0]}")
        k("s_and_b64 s[16:17], s[16:17], s[18:19]\ns_or_b64 s[16:17], s[16:17], s[20:21]\ns_and_b64 s[14:15], s[14:15], s[16:17]")
    k(f"s_cmp_eq_u64 s[14:15], -1\ns_cbranch_scc1 {GOT}")
    k(f"s_cmp_eq_u32 s{SB}, 0\ns_cbranch_scc1 {GOT}\ns_sub_u32 s{SB}, s{SB}, 1\ns_sleep 2\ns_branch {POLL}")
    k(f"{GOT}:")
    for z in range(4):
        k(f"v_add_u32 v{t[0]}, {4*z}, v{vh}\nv_cmp_gt_u32 vcc, s5, v{t[0]}\ns_nop 1")
        k(f"v_cndmask_b32 v{LB+4*z}, 0, v{LB+4*z}, vcc\nv_cndmask_b32 v{LB+4*z+2}, 0, v{LB+4*z+2}, vcc")
        cfma(k, CAR, CAR+1, LW+2*z, LW+2*z+1, LB+4*z, LB+4*z+2, CAR, CAR+1)
    k(f"ds_write_b64 v{ex}, v[{CAR}:{CAR+1}]\ns_waitcnt lgkmcnt(0)")
    for h in range(4): k(f"ds_read_b64 v[{GG+2*h}:{GG+2*h+1}], v{exr} offset:{128*h}")
    k("s_waitcnt lgkmcnt(0)")
    k(f"v_add_f32 v{CAR}, v{GG}, v{GG+2}\nv_add_f32 v{CAR+1}, v{GG+1}, v{GG+3}\nv_add_f32 v{GG+4}, v{GG+4}, v{GG+6}\nv_add_f32 v{GG+5}, v{GG+5}, v{GG+7}")
    k(f"v_add_f32 v{CAR}, v{CAR}, v{GG+4}\nv_add_f32 v{CAR+1}, v{CAR+1}, v{GG+5}")
    k(f"{NOLB}:")
    stamp(7)
    T.release(m_lb)
    IA = T.get(2, 2); IB = T.get(2, 2)
    cfma(k, IA, IA+1, Lh, Lh+1, CAR, CAR+1, PEX, PEX+1)
    cfma(k, IB, IB+1, L16, L16+1, IA, IA+1, AG, AG+2)
    for src, lane in ((IA, 0), (IB, 1)):
        k(f"v_mul_f32 v{Sa+lane}, v{CO}, v{src}\nv_fma_f32 v{Sa+lane}, -v{CO+1}, v{src+1}, v{Sa+lane}")
        k(f"v_mul_f32 v{Sa+2+lane}, -v{CO}, v{src+1}\nv_fma_f32 v{Sa+2+lane}, -v{CO+1}, v{src}, v{Sa+2+lane}")
    spin(k, vF, F_FX, 10, GG, 68, 4)
    HS = RB; HR = 272
    ha = T.get(); cv = T.get(2, 2)
    k(f"v_mul_u32_u24 v{ha}, {32*HR}, v{vh}\nv_lshl_add_u32 v{ha}, v{vc}, 1, v{ha}\ns_lshl_b32 s68, s4, 5\ns_add_u32 s68, s68, {HS}\nv_add_u32 v{ha}, s68, v{ha}")
    LCP = f"v[{LC}:{LC+1}]"
    cur, nxt = Sa, Sb
    for s_ in range(16):
        m = s_ >> 1; pr = s_ & 1
        step(nxt, cur, accR + 4*m + 2*pr, accI + 4*m + 2*pr, LCP)
        cur, nxt = nxt, cur
        k(f"v_cvt_pk_bf16_f32 v{cv}, v{cur}, v{cur+1}\nv_cvt_pk_bf16_f32 v{cv+1}, v{cur+2}, v{cur+3}")
        k(f"ds_write_b16 v{ha}, v{cv} offset:{s_*HR}\nds_write_b16_d16_hi v{ha}, v{cv} offset:{(16+s_)*HR}")
        k(f"ds_write_b16 v{ha}, v{cv+1} offset:{s_*HR+128}\nds_write_b16_d16_hi v{ha}, v{cv+1} offset:{(16+s_)*HR+128}")
    k("s_waitcnt lgkmcnt(0)")
    k(f"ds_write_b32 v{vFw}, v{vcnt} offset:{F_HD}")
    stamp(8)
    spin(k, vF, F_HD, 1, GG, 68, 4)
    k(f"s_lshl_b32 s68, s4, 5\nv_add_u32 v{t[0]}, s68, v{vh}\nv_mul_u32_u24 v{t[1]}, {HR}, v{t[0]}\nv_lshl_add_u32 v{t[1]}, v{vc}, 4, v{t[1]}\nv_add_u32 v{t[1]}, {HS}, v{t[1]}")
    for z in range(8):
        k(f"ds_read_b128 v[{accR+4*z}:{accR+4*z+3}], v{t[1]} offset:{4*z*HR}")
    k(f"v_mul_u32_u24 v{t[0]}, 2560, v{t[0]}\nv_lshl_add_u32 v{t[0]}, v{vc}, 4, v{t[0]}")
    k(f"s_lshl_b32 s68, s5, 7\ns_mul_i32 s68, s68, 2560\ns_lshl_b32 s69, s6, 8\ns_add_u32 s68, s68, s69")
    k("s_waitcnt lgkmcnt(0)")
    for z in range(8):
        k(f"s_add_u32 s69, s68, {4*z*2560}")
        k(f"buffer_store_dwordx4 v[{accR+4*z}:{accR+4*z+3}], v{t[0]}, s[44:47], s69 offen {store_flags}")
    return max(R.hi, T.hi)

def gen_Aprod(k, END, stamp=lambda i: None, dump=None):
    k(f"s_setprio {PRIO_P}")
    R = Regs(2, 167)
    vc = R.get(); vh = R.get(); vF = R.get(); vFw = R.get()
    vX = [R.get() for _ in range(4)]
    t = [R.get() for _ in range(8)]
    vtag = R.get(); fl = R.get(4, 4)
    k(f"v_and_b32 v{vc}, 15, v1\nv_lshrrev_b32 v{vh}, 4, v1\nv_mov_b32 v{vF}, {FLG}")
    k(f"s_lshl_b32 s68, s7, 2\nv_add_u32 v{vFw}, s68, v{vF}")
    k(f"v_lshrrev_b32 v{t[0]}, 3, v1\nv_mul_u32_u24 v{t[0]}, 1280, v{t[0]}\nv_and_b32 v{t[1]}, 7, v1")
    def full(val):
        k(f"s_mov_b64 exec, 1\nv_mov_b32 v{t[6]}, {val}\nds_write_b32 v{vFw}, v{t[6]} offset:{F_FULL}\ns_mov_b64 exec, -1")
    BP = k.label("bprod")
    k(f"s_cmp_ge_u32 s7, 2\ns_cbranch_scc1 {BP}")
    k("s_lshl_b32 s68, s7, 2")
    for f in range(4):
        k(f"s_add_u32 s69, s68, {f}\nv_xor_b32 v{t[2]}, s69, v{t[1]}\nv_lshl_add_u32 v{vX[f]}, v{t[2]}, 4, v{t[0]}")
    k("s_lshl_b32 s72, s5, 7\ns_lshl_b32 s68, s7, 6\ns_add_u32 s72, s72, s68\ns_mul_i32 s72, s72, 1280")
    k(f"s_lshl_b32 s75, s7, 13\ns_add_u32 s75, s75, {RB}")
    k("s_lshl_b32 s76, s6, 7")
    k("s_waitcnt lgkmcnt(0)")
    mk_srd(k, 32, 8, SIZE["x"])
    def issueX(sl):
        slot = (sl % 3) * UN
        k("s_add_u32 s77, s72, s76")
        for g in range(8):
            k(f"s_add_u32 m0, s75, {slot + 1024*g}")
            if g: k(f"s_add_u32 s77, s77, {8*1280}")
            else: k("s_nop 0")
            k(f"buffer_load_dwordx4 v{vX[g >> 1]}, s[32:35], s77 offen lds")
        k("s_add_u32 s76, s76, 128\ns_cmp_eq_u32 s76, 1280\ns_cselect_b32 s76, 0, s76")
    issueX(0); issueX(1)
    mk_srd(k, 48, 28, 256)
    stamp(1)
    k("s_waitcnt vmcnt(8)")
    full(1)
    stamp(2)
    issueX(2)
    k("s_waitcnt vmcnt(8)")
    full(2)
    for s_ in range(8):
        if s_ + 3 <= 9:
            spin(k, vF, F_FX, s_ + 1, fl, 68, 4, sleep=PSLEEP)
        if s_ == 4: stamp(3)
        k("s_waitcnt vmcnt(0)")
        full(s_ + 3)
        if s_ == 3:
            k(f"v_mov_b32 v{t[5]}, 0\nbuffer_load_dword v{vtag}, v{t[5]}, s[48:51], 0 offen sc1")
        if s_ == 6:
            TG = k.label("tg"); NP = k.label("np"); NG_ = k.label("ngot")
            k(f"s_cmp_lg_u32 s7, 0\ns_cbranch_scc1 {TG}")
            k(f"{NP}:")
            k(f"v_readfirstlane_b32 s9, v{vtag}\ns_nop 1\ns_cmp_lg_u32 s9, 0\ns_cbranch_scc1 {NG_}")
            k(f"s_cmp_eq_u32 s{SB}, 0\ns_cbranch_scc1 {NG_}\ns_sub_u32 s{SB}, s{SB}, 1")
            k(f"s_sleep 4\nbuffer_load_dword v{vtag}, v{t[5]}, s[48:51], 0 offen sc1\ns_waitcnt vmcnt(0)\ns_branch {NP}")
            k(f"{NG_}:")
            k(f"s_mov_b64 exec, 1\nv_mov_b32 v{t[6]}, s9\nds_write_b32 v{vF}, v{t[6]} offset:{F_TAG}\ns_mov_b64 exec, -1")
            k(f"{TG}:")
        if s_ + 3 <= 9:
            if s_ == 4: stamp(4)
            issueX(s_ + 3)
            if s_ == 4: stamp(5)
    if dump: dump()
    k(f"s_branch {END}")
    k(f"{BP}:")
    vB0, vB1 = vX[0], vX[1]
    k(f"v_xor_b32 v{t[2]}, v{vh}, v{t[1]}\nv_lshl_add_u32 v{vB0}, v{t[2]}, 4, v{t[0]}")
    k(f"v_xor_b32 v{t[2]}, 4, v{t[2]}\nv_lshl_add_u32 v{vB1}, v{t[2]}, 4, v{t[0]}")
    k("s_sub_u32 s7, s7, 2")
    k("s_lshl_b32 s73, s6, 6\ns_lshl_b32 s68, s7, 5\ns_add_u32 s73, s73, s68\ns_mul_i32 s73, s73, 1280")
    k(f"s_lshl_b32 s75, s7, 13\ns_add_u32 s75, s75, {RB}")
    k("s_lshl_b32 s79, s6, 7")
    k("s_waitcnt lgkmcnt(0)")
    mk_srd(k, 36, 14, SIZE["ABre"]); mk_srd(k, 40, 16, SIZE["ABim"])
    def issueB(sl):
        slot = (3 + sl % 3) * UN
        k("s_add_u32 s78, s73, s79")
        for w in range(2):
            for z in range(4):
                k(f"s_add_u32 m0, s75, {slot + 4096*w + 1024*z}")
                row = 16*w + 8*(z & 1)
                k(f"s_add_u32 s77, s78, {row*1280}")
                srd = 36 if z < 2 else 40
                k(f"buffer_load_dwordx4 v{vB0 if z % 2 == 0 else vB1}, s[{srd}:{srd+3}], s77 offen lds")
        k("s_add_u32 s79, s79, 128\ns_cmp_eq_u32 s79, 1280\ns_cselect_b32 s79, 0, s79")
    issueB(0); issueB(1)
    k("s_waitcnt vmcnt(8)")
    full(1)
    issueB(2)
    k("s_waitcnt vmcnt(8)")
    full(2)
    for s_ in range(8):
        if s_ + 3 <= 9:
            spin(k, vF, F_FB, s_ + 1, fl, 68, 4, sleep=PSLEEP)
        k("s_waitcnt vmcnt(0)")
        full(s_ + 3)
        if s_ + 3 <= 9:
            issueB(s_ + 3)
    k(f"s_branch {END}")
    return R.hi

def gen_gate(k, END):
    k("s_load_dwordx2 s[8:9], s[0:1], 0\ns_load_dwordx2 s[24:25], s[0:1], 144\ns_load_dwordx2 s[30:31], s[0:1], 168")
    R = Regs(2, 160)
    t = [R.get() for _ in range(4)]
    GWD = R.get(5); GX = R.get(40, 2); ga = R.get(8); res = R.get()
    k(f"v_lshlrev_b32 v{t[1]}, 2, v1\ns_mul_i32 s13, s5, 1280")
    k("s_waitcnt lgkmcnt(0)")
    mk_srd(k, 32, 8, SIZE["x"]); mk_srd(k, 64, 24, 1280); mk_srd(k, 44, 30, WS_SIZE2)
    for z in range(5):
        k(f"buffer_load_dword v{GWD+z}, v{t[1]}, s[64:67], 0 offen offset:{256*z}")
    for r in range(8):
        for z in range(5):
            k(f"buffer_load_dword v{GX+5*r+z}, v{t[1]}, s[32:35], s13 offen offset:{256*z}")
        k("s_add_u32 s13, s13, 1280")
    k("s_waitcnt vmcnt(0)")
    for r in range(8):
        k(f"v_mov_b32 v{ga+r}, 0")
        for z in range(5):
            k(f"v_dot2_f32_bf16 v{ga+r}, v{GX+5*r+z}, v{GWD+z}, v{ga+r}")
    for sh in (8, 4, 2, 1):
        k("s_nop 1")
        for r in range(8):
            k(f"v_add_f32_dpp v{ga+r}, v{ga+r}, v{ga+r} row_ror:{sh} row_mask:0xf bank_mask:0xf")
    k("s_nop 1")
    k(f"v_mov_b32 v{res}, 0")
    for r in range(8):
        k(f"v_readlane_b32 s68, v{ga+r}, 0\nv_readlane_b32 s69, v{ga+r}, 16\nv_readlane_b32 s70, v{ga+r}, 32\nv_readlane_b32 s71, v{ga+r}, 48\ns_nop 1")
        k(f"v_mov_b32 v{t[2]}, s68\nv_add_f32 v{t[2]}, s69, v{t[2]}\nv_add_f32 v{t[2]}, s70, v{t[2]}\nv_add_f32 v{t[2]}, s71, v{t[2]}")
        k(f"v_cmp_eq_u32 vcc, {r}, v1\ns_nop 1\nv_cndmask_b32 v{res}, v{res}, v{t[2]}, vcc")
    k(f"v_cvt_pk_bf16_f32 v{res}, v{res}, v{res}\nv_lshlrev_b32 v{res}, 16, v{res}\nv_mul_f32 v{res}, {NLOG2E:#x}, v{res}\nv_exp_f32 v{res}, v{res}\ns_nop 0")
    k(f"v_add_f32 v{res}, 1.0, v{res}\nv_rcp_f32 v{res}, v{res}\ns_nop 0\nv_cvt_pk_bf16_f32 v{res}, v{res}, v{res}\nv_lshlrev_b32 v{res}, 16, v{res}")
    k(f"s_lshl_b32 s68, s5, 2\ns_add_u32 s68, s68, {WS_G}\nv_lshlrev_b32 v{t[2]}, 2, v1")
    k("s_mov_b64 exec, 0xff")
    k(f"buffer_store_dword v{res}, v{t[2]}, s[44:47], s68 offen")
    k(f"s_branch {END}")


def gen_pf_A1(k, ta, tb):
    k("s_sub_u32 s68, s2, 160\ns_lshr_b32 s68, s68, 3\ns_lshl_b32 s68, s68, 3\ns_add_u32 s68, s68, s3\ns_and_b32 s69, s2, 7")
    SK = k.label("pfs")
    k(f"s_mov_b32 s92, 0\ns_cmp_ge_u32 s68, 80\ns_cbranch_scc1 {SK}\ns_mov_b32 s92, 1")
    mk_srd(k, 88, 76, SIZE["ABre"])
    k("s_and_b32 s70, s69, 1\ns_mul_i32 s70, s70, 409600\ns_mul_i32 s71, s68, 5120\ns_add_u32 s70, s70, s71")
    k("s_bfm_b64 exec, 40, 0")
    k(f"buffer_load_dword v{tb}, v{ta}, s[88:91], s70 offen")
    mk_srd(k, 88, 78, SIZE["ABim"])
    k(f"buffer_load_dword v{tb}, v{ta}, s[88:91], s70 offen")
    k("s_mov_b64 exec, -1")
    mk_srd(k, 88, 72, SIZE["x"])
    k("s_lshr_b32 s70, s69, 1\ns_mul_i32 s70, s70, 655360\ns_lshl_b32 s71, s68, 13\ns_add_u32 s70, s70, s71")
    k(f"buffer_load_dword v{tb}, v{ta}, s[88:91], s70 offen")
    k(f"{SK}:")

def gen_B(k, stamp, store_flags=""):
    k("s_load_dwordx16 s[8:23], s[0:1], 80\ns_load_dwordx4 s[24:27], s[0:1], 160")
    R = Regs(2, 167)
    vc = R.get(); vh = R.get(); vF = R.get()
    P = R.get(6); vldt = R.get()
    ta = R.get(); tb = R.get(); tc = R.get(); td = R.get()
    k(f"v_and_b32 v{vc}, 15, v1\nv_lshrrev_b32 v{vh}, 4, v1\nv_mov_b32 v{vF}, {FLG}")
    k(f"v_lshlrev_b32 v{tc}, 2, v1")
    k(f"s_lshl_b32 s60, s5, 8\ns_lshl_b32 s61, s5, 1\nv_mov_b32 v{td}, s61")
    k("s_waitcnt lgkmcnt(0)")
    for i in range(6): mk_srd(k, 28 + 4*i, 8 + 2*i, SIZE["BAre"])
    mk_srd(k, 52, 20, 1280); mk_srd(k, 56, 26, WS_SIZE2); mk_srd(k, 64, 24, 256)
    k(f"s_mul_i32 s62, s3, {SW}")
    for i in range(6):
        k(f"buffer_load_dword v{P+i}, v{tc}, s[{28+4*i}:{31+4*i}], s60 offen")
    k(f"buffer_load_ushort v{vldt}, v{td}, s[52:55], 0 offen")
    PFB = k.label("pfb"); PFE = k.label("pfe")
    k("s_load_dwordx2 s[72:73], s[0:1], 0\ns_load_dwordx4 s[76:79], s[0:1], 24\ns_load_dwordx4 s[84:87], s[0:1], 40")
    k(f"v_lshlrev_b32 v{ta}, 7, v1")
    k("s_waitcnt lgkmcnt(0)")
    k(f"s_cmp_lt_u32 s2, 160\ns_cbranch_scc1 {PFB}")
    gen_pf_A1(k, ta, tb)
    k(f"s_branch {PFE}")
    k(f"{PFB}:")
    k("s_lshl_b32 s68, s2, 2\ns_add_u32 s68, s68, s3\ns_mul_i32 s70, s68, 1280")
    k("s_mov_b64 exec, 0x3ff")
    mk_srd(k, 88, 84, SIZE["ACre"])
    k(f"buffer_load_dword v{tb}, v{ta}, s[88:91], s70 offen")
    mk_srd(k, 88, 86, SIZE["ACre"])
    k(f"buffer_load_dword v{tb}, v{ta}, s[88:91], s70 offen")
    k("s_mov_b64 exec, -1")
    k(f"{PFE}:")
    stamp(1)
    k("s_mov_b32 m0, s62")
    def rowmap_addr(dst, vals, rowbase, tmp):
        lo_, hi_ = nib64(vals)
        k(f"v_lshlrev_b32 v{tmp}, 2, v{vc}")
        k(f"s_mov_b32 s68, {lo_:#x}\ns_mov_b32 s69, {hi_:#x}")
        k(f"v_lshrrev_b64 v[{dst}:{dst+1}], v{tmp}, s[68:69]")
        k(f"v_and_b32 v{dst}, 15, v{dst}")
        k(f"v_add_u32 v{dst}, {rowbase}, v{dst}")
        k(f"v_mul_u32_u24 v{dst}, {SROW}, v{dst}")
        k(f"v_lshl_add_u32 v{dst}, v{vh}, 4, v{dst}")
        k(f"v_add_u32 v{dst}, s62, v{dst}")
    aF = R.get(2, 2); aR2 = R.get(2, 2); aR3 = R.get(2, 2); aR4 = R.get(2, 2)
    rowmap_addr(aF, list(range(16)), 0, ta)
    rowmap_addr(aR2, [2*(i >> 2) + min(i & 3, 2) for i in range(16)], 0, ta)
    rowmap_addr(aR3, [((i >> 2) + (i & 1)) + 5 * ((i >> 1) & 1) for i in range(16)], 9, ta)
    ev = [0, 0, 1, 2]; od = [0, 1, 1, 2]
    rowmap_addr(aR4, [(od if (i & 1) else ev)[i >> 2] + 3 * ((i >> 1) & 1) for i in range(16)], 0, ta)
    vFp = R.get(); vFt = R.get()
    D = R.get(20, 4)
    XU = R.get(10, 4)
    for i in range(20):
        k(f"v_mov_b32 v{D+i}, 0")
    vdt = R.get()
    WV = k.label("wv"); WE = k.label("we"); W0 = k.label("w0")
    k(f"s_cmp_lt_u32 s2, 160\ns_cbranch_scc1 {WV}")
    k(f"s_cmp_eq_u32 s92, 0\ns_cbranch_scc1 {W0}")
    k(f"s_waitcnt vmcnt(3)\ns_branch {WE}")
    k(f"{W0}:\ns_waitcnt vmcnt(0)\ns_branch {WE}")
    k(f"{WV}:\ns_waitcnt vmcnt(2)")
    k(f"{WE}:")
    k(f"v_lshlrev_b32 v{vdt}, 16, v{vldt}\nv_mul_f32 v{vdt}, {LOG2E:#x}, v{vdt}\nv_exp_f32 v{vdt}, v{vdt}\ns_nop 0")
    k(f"v_cvt_pk_bf16_f32 v{vdt}, v{vdt}, v{vdt}\nv_lshlrev_b32 v{vdt}, 16, v{vdt}")
    stamp(2)
    m_k = R.mark()
    W1, W2, W4, W8, W16, W256, W512, W1024, Cc = [R.get(2, 2) for _ in range(9)]
    ea, eb, fa, fb, ga, gb = [R.get(2, 2) for _ in range(6)]
    aL = R.get(); th = R.get(); u0 = R.get(); u1 = R.get(); u2 = R.get(); u3 = R.get()
    q = [R.get() for _ in range(6)]
    pk = [R.get() for _ in range(6)]
    FF = R.get(16, 4); AF = R.get(32, 4)

    def direct(dst, e):
        if e == 1:
            k(f"v_exp_f32 v{u0}, v{aL}\nv_fract_f32 v{u1}, v{th}")
        else:
            k(f"v_mul_f32 v{u0}, {f2u(float(e)):#x}, v{aL}\nv_mul_f32 v{u1}, {f2u(float(e)):#x}, v{th}")
            k(f"v_exp_f32 v{u0}, v{u0}\nv_fract_f32 v{u1}, v{u1}")
        k(f"v_cos_f32 v{dst}, v{u1}\nv_sin_f32 v{dst+1}, v{u1}\ns_nop 0")
        k(f"v_mul_f32 v{dst}, v{dst}, v{u0}\nv_mul_f32 v{dst+1}, v{dst+1}, v{u0}")
    pkc = [0, 0, 0]
    def emit(val, row, ch=0):
        t_ = pk[2*ch + (pkc[ch] & 1)]; pkc[ch] += 1
        return [f"v_cvt_pk_bf16_f32 v{t_}, v{val}, v{val+1}", f"ds_write_addtid_b32 v{t_} offset:{row*SROW}"]
    def chain(start, step, n, row0, ra, rb, ch=0):
        ins = []; cur = start
        ins += emit(cur, row0, ch)
        for j in range(1, n):
            nxt = ra if cur != ra else rb
            ins += cmul(nxt, cur, step)
            ins += emit(nxt, row0 + j, ch)
            cur = nxt
        return ins, cur
    def mfma_tile(aaddr, rowoff, abuf):
        for ks in range(4):
            k(f"ds_read_b128 v[{AF+abuf+4*ks}:{AF+abuf+4*ks+3}], v{aaddr} offset:{rowoff*SROW + 64*ks}")
    def mfma_do(dreg, abuf):
        for ks in range(4):
            k(f"v_mfma_f32_16x16x32_bf16 v[{dreg}:{dreg+3}], v[{AF+abuf+4*ks}:{AF+abuf+4*ks+3}], v[{FF+4*ks}:{FF+4*ks+3}], v[{dreg}:{dreg+3}]")

    k("s_lshl_b32 s68, s7, 4\ns_sub_u32 s68, 16, s68")
    for i in range(6):
        k(f"v_lshlrev_b32 v{q[i]}, s68, v{P+i}\nv_and_b32 v{q[i]}, {MASKHI}, v{q[i]}")
    Ar, Ai, Br, Bi, Cr, Ci = q
    k(f"v_mul_f32 v{aL}, v{vdt}, v{Ar}\nv_mul_f32 v{th}, v{vdt}, v{Ai}")
    k(f"v_mul_f32 v{aL}, {LOG2E:#x}, v{aL}\nv_mul_f32 v{th}, {INV2PI:#x}, v{th}")
    k(f"v_mul_f32 v{Br}, v{vdt}, v{Br}\nv_mul_f32 v{Bi}, v{vdt}, v{Bi}")
    k(f"v_mul_f32 v{Cc}, v{Cr}, v{Br}\nv_mul_f32 v{Cc+1}, v{Cr}, v{Bi}")
    k(f"v_fma_f32 v{Cc}, -v{Ci}, v{Bi}, v{Cc}\nv_fma_f32 v{Cc+1}, v{Ci}, v{Br}, v{Cc+1}")
    direct(W1, 1); direct(W16, 16); direct(W256, 256)
    k(f"v_sub_f32 v{W16+1}, 0, v{W16+1}")
    k(f"v_mov_b32 v{pk[0]}, 0x3f80\nds_write_addtid_b32 v{pk[0]} offset:0")
    pkc[0] = 1
    cF, _ = chain(W16, W16, 15, 1, fa, fb, 0)
    cT, _ = chain(Cc, W1, 16, 16, ea, eb, 1)
    misc = cmul(W2, W1, W1) + cmul(W4, W2, W2) + cmul(W8, W4, W4) + cmul(W512, W256, W256) + cmul(W1024, W512, W512)
    for ins in interleave(cF, cT, misc): k(ins)
    k("s_waitcnt lgkmcnt(0)")
    for ks in range(4):
        k(f"ds_read_b128 v[{FF+4*ks}:{FF+4*ks+3}], v{aF} offset:{64*ks}")
    mfma_tile(aF, 16, 0)
    for ins in cmul(ga, Cc, W256) + cmul(ea, Cc, W512) + cmul(fa, ea, W256): k(ins)
    k("s_waitcnt lgkmcnt(0)")
    mfma_do(D, 0)
    c2, _ = chain(ga, W2, 9, 0, gb, W16, 0)
    c3a, _ = chain(ea, W4, 5, 9, eb, W1, 1)
    c3b, _ = chain(fa, W4, 5, 14, fb, W512, 2)
    for ins in interleave(c2, c3a, c3b): k(ins)
    k("s_waitcnt lgkmcnt(0)")
    mfma_tile(aR2, 0, 0)
    mfma_tile(aR3, 0, 16)
    for ins in cmul(ea, Cc, W1024) + cmul(eb, ea, W8) + cmul(fa, eb, W8): k(ins)
    stamp(3)
    stamp(4)
    k("s_waitcnt lgkmcnt(0)")
    mfma_do(D+4, 0); mfma_do(D+8, 16)
    chains = []
    for (st, ra, rb, col) in ((ea, ga, W1, 0), (eb, gb, W2, 1), (fa, fb, W4, 2)):
        ins = []; cur = st
        ins += emit(cur, col, col)
        for T in range(1, 4):
            nxt = ra if cur != ra else rb
            ins += cmul(nxt, cur, W256)
            ins += emit(nxt, 3*T + col, col)
            cur = nxt
        chains.append(ins)
    for ins in interleave(*chains): k(ins)
    k("s_waitcnt lgkmcnt(0)")
    mfma_tile(aR4, 0, 0)
    mfma_tile(aR4, 6, 16)
    k("s_waitcnt lgkmcnt(0)")
    mfma_do(D+12, 0); mfma_do(D+16, 16)
    GOT = k.label("bgot"); POLL = k.label("bpoll"); OTH = k.label("both")
    k(f"s_cmp_lg_u32 s3, 0\ns_cbranch_scc1 {OTH}")
    k(f"s_lshr_b32 s68, s5, 6\nv_mov_b32 v{u0}, 0")
    k(f"s_lshl_b32 s68, s68, 9\ns_add_u32 s68, s68, {WS_FL}\nv_and_b32 v{u1}, 31, v1\nv_lshrrev_b32 v{u2}, 3, v{u1}\nv_and_b32 v{u1}, 7, v{u1}\nv_lshlrev_b32 v{u1}, 2, v{u1}\nv_lshl_add_u32 v{u1}, v{u2}, 7, v{u1}")
    k(f"{POLL}:")
    k(f"buffer_load_dword v{XU}, v{u0}, s[64:67], 0 offen sc1\nbuffer_load_dword v{XU+1}, v{u1}, s[56:59], s68 offen sc1\ns_waitcnt vmcnt(0)")
    k(f"v_cmp_eq_u32 s[70:71], v{XU}, v{XU+1}\nv_cmp_ne_u32 vcc, 0, v{XU}\ns_and_b64 s[70:71], s[70:71], vcc")
    k(f"s_cmp_eq_u64 s[70:71], -1\ns_cbranch_scc1 {POLL}_d")
    k(f"s_cmp_eq_u32 s{SB}, 0\ns_cbranch_scc1 {POLL}_d\ns_sub_u32 s{SB}, s{SB}, 1\ns_sleep 8\ns_branch {POLL}")
    k(f"{POLL}_d:")
    set_flag(k, vF, F_XOK, 1, u0)
    k(f"s_branch {GOT}")
    k(f"{OTH}:")
    spin(k, vF, F_XOK, 1, u0, 68, 1, sleep=8)
    k(f"{GOT}:")
    k(f"s_lshl_b32 s68, s5, 12\ns_lshl_b32 s69, s7, 11\ns_add_u32 s68, s68, s69\ns_add_u32 s68, s68, {WS_XR}")
    k(f"v_lshlrev_b32 v{u0}, 4, v1")
    k(f"buffer_load_dwordx4 v[{XU}:{XU+3}], v{u0}, s[56:59], s68 offen sc1\nbuffer_load_dwordx4 v[{XU+4}:{XU+7}], v{u0}, s[56:59], s68 offen offset:1024 sc1")
    k(f"buffer_load_dword v{XU+8}, v{u0}, s[56:59], s68 offen offset:16 sc1\nbuffer_load_dword v{XU+9}, v{u0}, s[56:59], s68 offen offset:1040 sc1")
    exw = u0; exr = u1
    k(f"v_lshl_add_u32 v{exw}, v1, 4, s62")
    k(f"s_xor_b32 s68, s3, 1\ns_mul_i32 s68, s68, {SW}\nv_lshl_add_u32 v{exr}, v1, 4, s68")
    k(f"s_mul_i32 s68, s6, {RU}\ns_add_u32 s63, s63, s68")
    k("s_waitcnt vmcnt(0)")
    k(f"s_cmp_eq_u32 s7, 1\ns_cselect_b32 s68, 63, 64\nv_cmp_eq_u32 vcc, s68, v1\ns_nop 1\nv_cndmask_b32 v{XU+9}, v{XU+9}, 0, vcc" if False else
      f"s_cmp_eq_u32 s7, 1\ns_cselect_b32 s68, 63, 64\nv_mov_b32 v{u2}, 0\nv_cmp_eq_u32 vcc, s68, v1\ns_nop 1\nv_cndmask_b32 v{XU+9}, v{XU+9}, v{u2}, vcc")
    ua = u2
    k(f"s_lshl_b32 s68, s7, 11\ns_add_u32 s68, s68, s63\nv_lshl_add_u32 v{ua}, v1, 4, s68")
    for i in range(2):
        x = XU + 4*i; e = XU + 8 + i
        k(f"ds_write_b128 v{ua}, v[{x}:{x+3}] offset:{V1OFF + 1024*i}")
        o = AF + 4*i
        k(f"v_alignbyte_b32 v{o}, v{x+1}, v{x}, 2\nv_alignbyte_b32 v{o+1}, v{x+2}, v{x+1}, 2\nv_alignbyte_b32 v{o+2}, v{x+3}, v{x+2}, 2\nv_alignbyte_b32 v{o+3}, v{e}, v{x+3}, 2")
        k(f"ds_write_b128 v{ua}, v[{o}:{o+3}] offset:{1024*i}")
    k(f"v_mov_b32 v{ga}, 0\nv_mov_b32 v{ga+1}, 0")
    k(f"s_mul_i32 s68, s7, {V1OFF}\ns_add_u32 s68, s68, s63\nv_lshl_add_u32 v{u3}, v1, 3, s68")
    k("v_cmp_gt_u32 vcc, 56, v1\ns_and_saveexec_b64 s[70:71], vcc")
    k(f"ds_write_b64 v{u3}, v[{ga}:{ga+1}] offset:4096")
    k("s_mov_b64 exec, s[70:71]")
    for tl in range(5):
        k(f"ds_write_b128 v{exw}, v[{D+4*tl}:{D+4*tl+3}] offset:{EX + 1024*tl}")
    k("s_waitcnt lgkmcnt(0)")
    k(f"s_lshl_b32 s68, s3, 2\nv_mov_b32 v{vFp}, {FLG + F_BP}\nv_add_u32 v{vFp}, s68, v{vFp}")
    set_flag(k, vFp, 0, 1, vFt)
    k(f"v_xor_b32 v{vFp}, 4, v{vFp}")
    spin(k, vFp, 0, 1, vFt, 68, 1)
    stamp(5)
    for tl in range(5):
        k(f"ds_read_b128 v[{AF+4*tl}:{AF+4*tl+3}], v{exr} offset:{EX + 1024*tl}")
    wa = u2
    k(f"v_lshlrev_b32 v{wa}, 5, v{vc}\nv_lshl_add_u32 v{wa}, v{vh}, 3, v{wa}\nv_add_u32 v{wa}, s62, v{wa}")
    k(f"v_and_b32 v{u3}, 1, v{vh}\nv_cmp_eq_u32 vcc, 1, v{u3}")
    k("s_waitcnt lgkmcnt(0)")
    for i in range(20):
        k(f"v_add_f32 v{D+i}, v{D+i}, v{AF+i}")
    Z = FF
    k(f"v_cvt_pk_bf16_f32 v{Z}, v{D}, v{D+1}\nv_cvt_pk_bf16_f32 v{Z+1}, v{D+2}, v{D+3}")
    k(f"v_cvt_pk_bf16_f32 v{Z+2}, v{D+4}, v{D+4}\nv_cvt_pk_bf16_f32 v{Z+3}, v{D+5}, v{D+6}")
    for T, (a_, b_) in ((2, (D+8, D+9)), (3, (D+10, D+11))):
        k(f"v_cndmask_b32 v{u3}, v{a_}, v{b_}, vcc")
        k(f"v_cvt_pk_bf16_f32 v{Z+2*T}, v{a_}, v{a_}\nv_cvt_pk_bf16_f32 v{Z+2*T+1}, v{u3}, v{b_}")
    for T, (a_, b_) in ((4, (D+12, D+13)), (5, (D+14, D+15)), (6, (D+16, D+17)), (7, (D+18, D+19))):
        k(f"v_cvt_pk_bf16_f32 v{Z+2*T}, v{a_}, v{b_}\nv_cvt_pk_bf16_f32 v{Z+2*T+1}, v{b_}, v{b_}")
    G1 = k.label("g1"); GE = k.label("ge")
    k(f"v_lshl_add_u32 v{u1}, v1, 2, s62")
    k(f"s_cmp_eq_u32 s7, 1\ns_cbranch_scc1 {G1}")
    for T in range(8):
        k(f"ds_write_b32 v{wa}, v{Z+2*T} offset:{512*T + 60}\nds_write_b32 v{wa}, v{Z+2*T+1} offset:{512*T + 64}")
    k("v_cmp_gt_u32 vcc, 15, v1\ns_and_saveexec_b64 s[70:71], vcc")
    k(f"ds_write_b32 v{u1}, v{ga}")
    k("s_mov_b64 exec, s[70:71]")
    k(f"s_branch {GE}")
    k(f"{G1}:")
    for T in range(8):
        k(f"ds_write_b64 v{wa}, v[{Z+2*T}:{Z+2*T+1}] offset:{512*T + 56}")
    k("v_cmp_gt_u32 vcc, 14, v1\ns_and_saveexec_b64 s[70:71], vcc")
    k(f"ds_write_b32 v{u1}, v{ga}")
    k("s_mov_b64 exec, s[70:71]")
    k(f"{GE}:")
    k("s_waitcnt lgkmcnt(0)")
    k(f"s_lshl_b32 s68, s3, 2\nv_mov_b32 v{vFp}, {FLG + F_BP}\nv_add_u32 v{vFp}, s68, v{vFp}")
    set_flag(k, vFp, 0, 2, vFt)
    k(f"v_xor_b32 v{vFp}, 4, v{vFp}")
    spin(k, vFp, 0, 2, vFt, 68, 1)
    stamp(6)
    R.release(m_k)
    DD = R.get(32, 4)
    A0 = R.get(32, 4); B0 = R.get(32, 4); A1 = R.get(4, 4)
    va = R.get(); vb = R.get(); tq = R.get(); tr = R.get()
    k(f"v_and_b32 v{tq}, 1, v{vc}\nv_mul_u32_u24 v{tq}, {SW-4}, v{tq}\nv_lshl_add_u32 v{tq}, v{vc}, 2, v{tq}\nv_lshl_add_u32 v{tq}, v{vh}, 4, v{tq}")
    k(f"s_and_b32 s68, s3, 6\ns_mul_i32 s68, s68, {SW}\ns_lshl_b32 s69, s7, 8\ns_add_u32 s68, s68, s69\nv_add_u32 v{va}, s68, v{tq}")
    k(f"v_and_b32 v{tq}, 1, v{vc}\nv_mul_u32_u24 v{tq}, {V1OFF}, v{tq}\nv_lshrrev_b32 v{tr}, 1, v{vc}\nv_lshlrev_b32 v{tr}, 6, v{tr}\nv_sub_u32 v{tq}, v{tq}, v{tr}")
    k(f"v_lshl_add_u32 v{tq}, v{vh}, 4, v{tq}\nv_add_u32 v{tq}, {4032 - 3584}, v{tq}\ns_add_u32 s68, s63, s69\nv_add_u32 v{vb}, s68, v{tq}")
    LT = LdsTrack(k)
    def ldA(m, kp):
        off = 64*kp + 512*m
        LT.issue(f"ds_read_b64 v[{A0+4*m}:{A0+4*m+1}], v{va} offset:{off}", ("A", m))
        LT.issue(f"ds_read_b64 v[{A0+4*m+2}:{A0+4*m+3}], v{va} offset:{off+8}", ("A", m))
    def ldB(nu, kp):
        LT.issue(f"ds_read_b128 v[{B0+4*nu}:{B0+4*nu+3}], v{vb} offset:{64*kp + 512*(7-nu)}", ("B", nu))
    for m in range(8):
        ldB(7 - m, 0); ldA(m, 0)
    for i in range(32):
        k(f"v_mov_b32 v{DD+i}, 0")
    for kp in range(4):
        nxt = kp + 1 if kp + 1 < 4 else None
        pendA = {}
        for m in range(8):
            for n in range(7, m - 1, -1):
                LT.need(("A", m), ("B", n - m)) if (m == 0 or n == 7) else None
                k(f"v_mfma_f32_16x16x32_bf16 v[{DD+4*n}:{DD+4*n+3}], v[{A0+4*m}:{A0+4*m+3}], v[{B0+4*(n-m)}:{B0+4*(n-m)+3}], v[{DD+4*n}:{DD+4*n+3}]")
                if n == 7 and nxt is not None: ldB(7 - m, nxt)
            if nxt is not None: ldA(m, nxt)
    stamp(7)
    k(f"v_lshl_add_u32 v{tq}, v1, 4, s62")
    k(f"s_xor_b32 s68, s3, 1\ns_mul_i32 s68, s68, {SW}\nv_lshl_add_u32 v{tr}, v1, 4, s68")
    S1 = k.label("s1"); SE = k.label("se")
    k("s_nop 7")
    k(f"s_cmp_eq_u32 s7, 1\ns_cbranch_scc1 {S1}")
    for n in range(4):
        k(f"ds_write_b128 v{tq}, v[{DD+16+4*n}:{DD+16+4*n+3}] offset:{EX + 1024*n}")
    k(f"s_branch {SE}")
    k(f"{S1}:")
    for n in range(4):
        k(f"ds_write_b128 v{tq}, v[{DD+4*n}:{DD+4*n+3}] offset:{EX + 1024*n}")
    for i in range(16):
        k(f"v_mov_b32 v{DD+i}, v{DD+16+i}")
    k(f"{SE}:")
    k("s_waitcnt lgkmcnt(0)")
    k(f"s_lshl_b32 s68, s3, 2\nv_mov_b32 v{vFp}, {FLG + F_BP}\nv_add_u32 v{vFp}, s68, v{vFp}")
    set_flag(k, vFp, 0, 3, vFt)
    k(f"v_xor_b32 v{vFp}, 4, v{vFp}")
    spin(k, vFp, 0, 3, vFt, 68, 1)
    for n in range(4):
        k(f"ds_read_b128 v[{B0+4*n}:{B0+4*n+3}], v{tr} offset:{EX + 1024*n}")
    k(f"v_lshrrev_b32 v{tq}, 1, v{vc}\nv_lshlrev_b32 v{tq}, 6, v{tq}\nv_lshl_add_u32 v{tq}, v{vh}, 4, v{tq}")
    k(f"s_lshl_b32 s68, s5, 12\ns_lshl_b32 s69, s7, 11\ns_add_u32 s68, s68, s69\ns_add_u32 s68, s68, {WS_YB}")
    k("s_waitcnt lgkmcnt(0)")
    for i in range(16):
        k(f"v_add_f32 v{DD+i}, v{DD+i}, v{B0+i}")
    for n in range(4):
        o = A0 + 4*n
        k("s_nop 1")
        for r in range(4):
            k(f"v_mov_b32_dpp v{A1+r}, v{DD+4*n+r} quad_perm:[1,0,3,2] row_mask:0xf bank_mask:0xf")
        for r in range(4):
            k(f"v_cvt_pk_bf16_f32 v{o+r}, v{DD+4*n+r}, v{A1+r}")
    k(f"v_and_b32 v{tr}, 1, v{vc}\nv_cmp_eq_u32 vcc, 0, v{tr}\ns_and_saveexec_b64 s[70:71], vcc")
    for n in range(4):
        o = A0 + 4*n
        k(f"buffer_store_dwordx4 v[{o}:{o+3}], v{tq}, s[56:59], s68 offen offset:{512*n} {store_flags}")
    k("s_mov_b64 exec, s[70:71]")
    stamp(8)
    return R.hi

def gen_T(k, END, stamp=lambda i: None, dump=None):
    k("s_setprio 3")
    k("s_load_dwordx2 s[8:9], s[0:1], 0\ns_load_dwordx4 s[28:31], s[0:1], 160")
    k("s_mul_i32 s6, s5, 6554\ns_lshr_b32 s6, s6, 16")
    k("s_mul_i32 s7, s6, 10\ns_sub_u32 s7, s5, s7")
    R = Regs(2, 160)
    X = R.get(32, 4); Y = R.get(32, 4); t = [R.get() for _ in range(8)]; vn = R.get()
    k(f"v_lshrrev_b32 v{t[0]}, 3, v1\nv_and_b32 v{t[1]}, 7, v1\nv_mul_u32_u24 v{t[2]}, 1280, v{t[0]}\nv_lshl_add_u32 v{t[2]}, v{t[1]}, 4, v{t[2]}")
    k("s_lshl_b32 s10, s6, 6\ns_mul_i32 s10, s10, 1280\ns_lshl_b32 s11, s7, 7\ns_add_u32 s12, s10, s11")
    k("s_waitcnt lgkmcnt(0)")
    mk_srd(k, 32, 8, SIZE["x"]); mk_srd(k, 44, 30, WS_SIZE2); mk_srd(k, 48, 28, 256)
    for g in range(8):
        k(f"s_add_u32 s13, s12, {g*8*1280}")
        k(f"buffer_load_dwordx4 v[{X+4*g}:{X+4*g+3}], v{t[2]}, s[32:35], s13 offen")
    stamp(1)
    stamp(2)
    NW = k.label("tnw")
    k(f"v_mov_b32 v{t[7]}, 0")
    k(f"s_cmp_lg_u32 s5, 0\ns_cbranch_scc1 {NW}")
    k(f"s_memrealtime s[14:15]\ns_waitcnt lgkmcnt(0)\ns_or_b32 s14, s14, 1\nv_mov_b32 v{vn}, s14")
    k("s_mov_b64 s[16:17], exec\ns_mov_b64 exec, 1")
    k(f"buffer_store_dword v{vn}, v{t[7]}, s[48:51], 0 offen sc1")
    k("s_mov_b64 exec, s[16:17]")
    k(f"{NW}:")
    k(f"v_xor_b32 v{t[3]}, v{t[0]}, v{t[1]}\nv_lshlrev_b32 v{t[3]}, 4, v{t[3]}\nv_lshl_add_u32 v{t[3]}, v{t[0]}, 7, v{t[3]}\nv_add_u32 v{t[3]}, s3, v{t[3]}")
    k("s_waitcnt vmcnt(0)")
    stamp(3)
    k(f"buffer_load_dword v{vn}, v{t[7]}, s[48:51], 0 offen sc1")
    for g in range(8):
        k(f"ds_write_b128 v{t[3]}, v[{X+4*g}:{X+4*g+3}] offset:{1024*g}")
    k("s_waitcnt lgkmcnt(0)")
    k(f"v_and_b32 v{t[0]}, 31, v1\nv_lshrrev_b32 v{t[1]}, 5, v1\nv_lshrrev_b32 v{t[2]}, 2, v{t[0]}\nv_and_b32 v{t[4]}, 3, v{t[0]}")
    k(f"v_lshlrev_b32 v{t[5]}, 12, v{t[1]}\nv_lshl_add_u32 v{t[5]}, v{t[4]}, 2, v{t[5]}\nv_add_u32 v{t[5]}, s3, v{t[5]}")
    for e7 in range(8):
        k(f"v_xor_b32 v{t[6]}, {e7}, v{t[2]}\nv_lshl_add_u32 v{t[6]}, v{t[6]}, 4, v{t[5]}")
        for e in range(e7, 32, 8):
            k(f"ds_read_b32 v{X+e}, v{t[6]} offset:{128*e}")
        if e7 == 3: k("s_waitcnt lgkmcnt(0)")
    k("s_mov_b32 s14, 0x05040100\ns_mov_b32 s15, 0x07060302")
    k(f"v_sub_u32 v{t[1]}, 1, v{t[1]}\nv_lshlrev_b32 v{t[1]}, 2, v{t[1]}")
    k("s_waitcnt lgkmcnt(0)")
    for half, sel in ((0, "s14"), (1, "s15")):
        k(f"v_lshlrev_b32 v{t[2]}, 1, v{t[0]}\nv_add_u32 v{t[2]}, {half}, v{t[2]}\nv_and_b32 v{t[4]}, 7, v{t[2]}\nv_lshlrev_b32 v{t[2]}, 7, v{t[2]}\nv_add_u32 v{t[2]}, s3, v{t[2]}")
        for q in range(4):
            o = Y + 16*half + 4*q
            for dw in range(4):
                i0 = 2*dw
                k(f"v_perm_b32 v{o+dw}, v{X + 31 - 8*q - i0 - 1}, v{X + 31 - 8*q - i0}, {sel}")
            k(f"v_add_u32 v{t[5]}, {q}, v{t[1]}\nv_xor_b32 v{t[5]}, v{t[5]}, v{t[4]}\nv_lshl_add_u32 v{t[5]}, v{t[5]}, 4, v{t[2]}")
            k(f"ds_write_b128 v{t[5]}, v[{o}:{o+3}]")
    k("s_waitcnt lgkmcnt(0)")
    k(f"v_lshrrev_b32 v{t[0]}, 3, v1\nv_and_b32 v{t[1]}, 7, v1\nv_xor_b32 v{t[2]}, v{t[0]}, v{t[1]}\nv_lshlrev_b32 v{t[2]}, 4, v{t[2]}\nv_lshl_add_u32 v{t[2]}, v{t[0]}, 7, v{t[2]}\nv_add_u32 v{t[2]}, s3, v{t[2]}")
    for g in range(8):
        k(f"ds_read_b128 v[{X+4*g}:{X+4*g+3}], v{t[2]} offset:{1024*g}")
    k(f"v_lshlrev_b32 v{t[3]}, 12, v{t[0]}\nv_lshl_add_u32 v{t[3]}, v{t[1]}, 4, v{t[3]}")
    k(f"s_lshl_b32 s10, s7, 18\ns_sub_u32 s11, 31, s6\ns_lshl_b32 s11, s11, 7\ns_add_u32 s10, s10, s11\ns_add_u32 s10, s10, {WS_XR}")
    k("s_waitcnt lgkmcnt(0)")
    for g in range(8):
        k(f"s_add_u32 s13, s10, {g*8*4096}")
        k(f"buffer_store_dwordx4 v[{X+4*g}:{X+4*g+3}], v{t[3]}, s[44:47], s13 offen sc1")
    stamp(4)
    k("s_waitcnt vmcnt(0)")
    stamp(5)
    NP = k.label("tnp"); NG = k.label("tng")
    k("s_mov_b32 s18, 0x100000")
    k(f"{NP}:")
    k(f"v_readfirstlane_b32 s14, v{vn}\ns_nop 1\ns_cmp_lg_u32 s14, 0\ns_cbranch_scc1 {NG}")
    k(f"s_sleep 4\nbuffer_load_dword v{vn}, v{t[7]}, s[48:51], 0 offen sc1\ns_waitcnt vmcnt(0)")
    k(f"s_sub_u32 s18, s18, 1\ns_cmp_lg_u32 s18, 0\ns_cbranch_scc1 {NP}")
    k(f"{NG}:")
    k(f"s_lshl_b32 s10, s7, 9\ns_lshr_b32 s11, s6, 3\ns_lshl_b32 s11, s11, 7\ns_add_u32 s10, s10, s11\ns_and_b32 s11, s6, 7\ns_lshl_b32 s11, s11, 2\ns_add_u32 s10, s10, s11\ns_add_u32 s10, s10, {WS_FL}")
    k(f"v_mov_b32 v{vn}, s14")
    k("s_mov_b64 exec, 1")
    k(f"buffer_store_dword v{vn}, v{t[7]}, s[44:47], s10 offen sc1")
    k("s_mov_b64 exec, -1")
    if dump: dump()


def gen_PF(k, END):
    k("s_load_dwordx16 s[8:23], s[0:1], 0")
    k("v_lshlrev_b32 v2, 7, v1")
    k("s_waitcnt lgkmcnt(0)")
    mk_srd(k, 32, 8, SIZE["x"]); mk_srd(k, 36, 14, SIZE["ABre"]); mk_srd(k, 40, 16, SIZE["ABim"]); mk_srd(k, 44, 18, SIZE["ACre"]); mk_srd(k, 48, 20, SIZE["ACim"])
    SK = k.label("pfs")
    k(f"s_cmp_ge_u32 s5, 40\ns_cbranch_scc1 {SK}")
    k("s_and_b32 s24, s6, 1\ns_mul_i32 s24, s24, 409600\ns_mul_i32 s25, s5, 10240\ns_add_u32 s24, s24, s25")
    k("buffer_load_dword v6, v2, s[36:39], s24 offen\nbuffer_load_dword v7, v2, s[40:43], s24 offen")
    k("s_lshr_b32 s26, s6, 1\ns_mul_i32 s26, s26, 655360\ns_lshl_b32 s25, s5, 14\ns_add_u32 s26, s26, s25")
    k("buffer_load_dword v4, v2, s[32:35], s26 offen\ns_add_u32 s26, s26, 8192\nbuffer_load_dword v5, v2, s[32:35], s26 offen")
    k("s_add_u32 s24, s24, 8192\ns_mov_b64 exec, 0xffff")
    k("buffer_load_dword v8, v2, s[36:39], s24 offen\nbuffer_load_dword v9, v2, s[40:43], s24 offen")
    k(f"{SK}:")
    k("s_mov_b64 exec, 0x1ffff\ns_mul_i32 s24, s7, 2176")
    k("buffer_load_dword v10, v2, s[44:47], s24 offen\nbuffer_load_dword v11, v2, s[48:51], s24 offen")
    k("s_mov_b64 exec, -1")
    k("s_barrier")
    k(f"s_branch {END}")

def gen_k1(dbg=False, store_flags="", noB=False, prof=False):
    k = Kern("k1_kernel", 256, 768, lds=LDS1, vgpr=168, sgpr=100)
    END = k.name + "_end"
    st = Stamper(k, dbg)
    k(f"s_cmp_ge_u32 s2, 256\ns_cbranch_scc1 {END}")
    st.start()
    if prof: k("s_memrealtime s[94:95]\ns_memtime s[92:93]") if False else k("s_memrealtime s[94:95]")
    wave_id(k, 4, 1)
    k(f"v_and_b32 v1, 63, v0\ns_mov_b32 s{SB}, 0x200000")
    ZS = k.label("zs")
    k(f"s_cmp_lg_u32 s4, 8\ns_cbranch_scc1 {ZS}")
    k(f"v_mov_b32 v2, 0\nv_lshlrev_b32 v3, 2, v1\nv_add_u32 v3, {FLG}, v3\nds_write_b32 v3, v2\ns_waitcnt lgkmcnt(0)")
    k(f"{ZS}:")
    k("s_barrier")
    BBL = k.label("bb"); BROLE = k.label("brole"); AP = k.label("ap"); PW = k.label("pw"); ZB = k.label("zb"); AA = k.label("aa")
    k(f"s_cmp_ge_u32 s2, 160\ns_cbranch_scc1 {BBL}")
    k(f"s_cmp_lt_u32 s4, 4\ns_cbranch_scc1 {AA}\ns_cmp_ge_u32 s4, 8\ns_cbranch_scc1 {AA}")
    k(f"s_sub_u32 s3, s4, 4\ns_lshr_b32 s6, s3, 1\ns_lshl_b32 s5, s2, 1\ns_add_u32 s5, s5, s6\ns_and_b32 s7, s3, 1\ns_mov_b32 s63, {UB_AB}\ns_branch {BROLE}")
    k(f"{AA}:")
    k("s_load_dwordx16 s[8:23], s[0:1], 0\ns_load_dwordx4 s[28:31], s[0:1], 160")
    k("s_and_b32 s68, s2, 7\ns_lshr_b32 s69, s2, 3\ns_mul_i32 s70, s69, 52\ns_lshr_b32 s70, s70, 8")
    k("s_mul_i32 s71, s70, 5\ns_sub_u32 s71, s69, s71")
    k("s_lshr_b32 s5, s68, 1\ns_lshl_b32 s5, s5, 2\ns_add_u32 s5, s5, s70")
    k("s_and_b32 s6, s68, 1\ns_mul_i32 s6, s6, 5\ns_add_u32 s6, s6, s71")
    k(f"s_sub_u32 s7, s4, 8\ns_cmp_ge_u32 s4, 8\ns_cbranch_scc1 {AP}")
    hiA = gen_Acons(k, st, store_flags)
    st.dump(44, END, 4, wave=0)
    if prof:
        k("s_waitcnt vmcnt(0)\ns_memrealtime s[92:93]\ns_waitcnt lgkmcnt(0)")
        k(f"s_cmp_lg_u32 s4, 0\ns_cbranch_scc1 {END}")
        k(f"s_lshl_b32 s68, s2, 3\ns_add_u32 s68, s68, {WS_ST}\nv_mov_b32 v2, s94\nv_mov_b32 v3, s92\nv_mov_b32 v4, 0\ns_mov_b64 exec, 1")
        k("buffer_store_dwordx2 v[2:3], v4, s[44:47], s68 offen")
    k(f"s_branch {END}")
    k(f"{AP}:")
    def pdump():
        CONT = k.label("pc")
        mk_srd(k, 44, 30, WS_SIZE2)
        k("s_add_u32 s2, s2, 768")
        st.dump(44, CONT, 4, wave=8)
        k(f"{CONT}:")
    hiP = gen_Aprod(k, END, st, pdump if dbg else None)
    k(f"{BBL}:")
    k(f"s_cmp_ge_u32 s4, 8\ns_cbranch_scc1 {PW}")
    NB = k.label("nb")
    k(f"s_cmp_ge_u32 s2, 240\ns_cbranch_scc1 {NB}")
    k(f"s_mov_b32 s3, s4\ns_lshr_b32 s6, s3, 1\ns_sub_u32 s5, s2, 160\ns_lshl_b32 s5, s5, 2\ns_add_u32 s5, s5, s6\ns_add_u32 s5, s5, 320\ns_and_b32 s7, s3, 1\ns_mov_b32 s63, {UB_BB}")
    k(f"{BROLE}:")
    if noB: k(f"s_branch {END}")
    st.n = 0
    hiB = gen_B(k, st, store_flags)
    st.dumpB(56, END) if dbg else None
    k(f"s_branch {END}")
    k(f"{NB}:")
    k("s_load_dwordx2 s[72:73], s[0:1], 0\ns_load_dwordx4 s[76:79], s[0:1], 24\ns_mov_b32 s3, s4\nv_lshlrev_b32 v2, 7, v1\ns_waitcnt lgkmcnt(0)")
    gen_pf_A1(k, 2, 3)
    k(f"s_branch {END}")
    k(f"{PW}:")
    k("s_sub_u32 s68, s2, 160\ns_lshl_b32 s97, s68, 2\ns_sub_u32 s69, s4, 8\ns_add_u32 s97, s97, s69")
    GT = k.label("gt"); NT = k.label("nt")
    k(f"s_cmp_ge_u32 s97, 320\ns_cbranch_scc1 {NT}")
    k(f"s_mov_b32 s5, s97\ns_lshl_b32 s3, s69, 13\ns_add_u32 s3, s3, {TSCB}")
    def tdump():
        CONT = k.label("tc")
        k("s_add_u32 s2, s2, 512")
        st.dump(44, CONT, 4, wave=8)
        k("s_mov_b64 exec, -1")
        k(f"{CONT}:")
        k("s_sub_u32 s2, s2, 512")
    gen_T(k, END, st, tdump if dbg else None)
    k(f"s_branch {GT}")
    k(f"{NT}:")
    k(f"{GT}:")
    k(f"s_cmp_ge_u32 s97, 256\ns_cbranch_scc1 {END}")
    k("s_lshl_b32 s5, s97, 3")
    gen_gate(k, END)
    k(f"{END}:\ns_endpgm")
    print("vgprs A", hiA, "P", hiP, "B", hiB)
    return k
```

```python
from common import *

NST = 7
STG = 18432
XT = NST * STG
YT = XT + 10240
LDS2 = YT + 10240
OST = 0
NSL = 20

def gen_k2(dbg_time=False, prof=False):
    k = Kern("k2_kernel", 256, 512, lds=LDS2, vgpr=160, sgpr=100)
    def stamp(i):
        if dbg_time:
            k(f"s_memtime s[{64+2*i}:{65+2*i}]\ns_waitcnt lgkmcnt(0)")
    END = k.name + "_end"
    k(f"s_cmp_ge_u32 s2, 256\ns_cbranch_scc1 {END}")
    its = [k.srd(8, "x"), k.srd(12, "out"), k.srd(16, "ws", size=WS_SIZE2), k.srd(20, "ADsk"), k.srd(24, "BDsk")]
    if dbg_time:
        its.append(k.srd(60, "dbg"))
        k("s_memtime s[64:65]")
    if prof: k("s_memrealtime s[90:91]\ns_load_dwordx2 s[88:89], s[0:1], 160")
    wave_id(k, 28, 1)
    k("v_and_b32 v1, 63, v0")
    k("s_and_b32 s30, s2, 7\ns_lshr_b32 s31, s2, 3")
    k("s_lshr_b32 s32, s30, 1\ns_lshl_b32 s32, s32, 3\ns_lshr_b32 s33, s31, 2\ns_add_u32 s32, s32, s33")
    k("s_and_b32 s33, s30, 1\ns_lshl_b32 s33, s33, 2\ns_and_b32 s34, s31, 3\ns_add_u32 s33, s33, s34")
    k("s_lshl_b32 s32, s32, 6")
    k("s_mul_i32 s33, s33, 80")
    k.srd_fin(its)
    PROD = k.label("prod")
    k(f"s_cmp_ge_u32 s28, 4\ns_cbranch_scc1 {PROD}")

    R = Regs(2, 160)
    acc = R.get(20, 4)
    E1 = R.get(20, 4); E2 = R.get(20, 4)
    fX = R.get(24, 4); fY = R.get(24, 4)
    aA = R.get(); aB = R.get(); aA1 = R.get(); aB1 = R.get()
    vg = R.get(); vomg = R.get(); vc = R.get(); vh = R.get()
    t = [R.get() for _ in range(12)]
    dA = R.get(10, 2); dB = R.get(10, 2)
    k(f"v_and_b32 v{vc}, 15, v1\nv_lshrrev_b32 v{vh}, 4, v1")
    k(f"s_mul_i32 s35, s32, 1280\ns_lshl_b32 s36, s33, 1\ns_add_u32 s35, s35, s36")
    k(f"s_lshl_b32 s36, s28, 6")
    for z in range(3):
        skip = None
        if z == 2:
            skip = k.label("sk")
            k(f"s_cmp_ge_u32 s28, 2\ns_cbranch_scc1 {skip}")
        k(f"v_add_u32 v{t[0]}, s36, v1")
        if z: k(f"v_add_u32 v{t[0]}, {256*z}, v{t[0]}")
        k(f"v_mul_u32_u24 v{t[1]}, 6554, v{t[0]}\nv_lshrrev_b32 v{t[1]}, 16, v{t[1]}")
        k(f"v_mul_u32_u24 v{t[2]}, 10, v{t[1]}\nv_sub_u32 v{t[2]}, v{t[0]}, v{t[2]}")
        k(f"v_mul_u32_u24 v{t[1]}, 1280, v{t[1]}\nv_lshl_add_u32 v{t[1]}, v{t[2]}, 4, v{t[1]}")
        k(f"s_lshl_b32 s37, s28, 10\ns_add_u32 m0, s37, {XT + 4096*z}")
        k("s_nop 0")
        k(f"buffer_load_dwordx4 v{t[1]}, s[8:11], s35 offen lds")
        k(f"v_lshrrev_b32 v{t[3]}, 3, v1\nv_lshlrev_b32 v{t[3]}, 12, v{t[3]}\nv_and_b32 v{t[4]}, 7, v1\nv_lshl_add_u32 v{t[3]}, v{t[4]}, 4, v{t[3]}")
        k(f"s_lshl_b32 s38, s28, 3\ns_add_u32 s38, s38, s33\ns_add_u32 s38, s38, {32*z}\ns_lshl_b32 s38, s38, 12")
        k(f"s_lshl_b32 s39, s32, 1\ns_add_u32 s38, s38, s39\ns_add_u32 s38, s38, {WS_YB}")
        k(f"s_add_u32 m0, s37, {YT + 4096*z}")
        k("s_nop 0")
        k(f"buffer_load_dwordx4 v{t[3]}, s[16:19], s38 offen lds")
        if skip: k(f"{skip}:")
    k(f"s_lshl_b32 s36, s28, 4\ns_add_u32 s36, s36, s32")
    k(f"v_add_u32 v{t[0]}, s36, v{vc}\nv_lshlrev_b32 v{t[0]}, 2, v{t[0]}")
    k(f"s_mov_b32 s37, {WS_G}")
    k(f"buffer_load_dword v{vg}, v{t[0]}, s[16:19], s37 offen")
    k(f"v_lshlrev_b32 v{t[0]}, 3, v{vh}\ns_lshl_b32 s37, s33, 1")
    for j in range(5):
        k(f"buffer_load_dwordx2 v[{dA+2*j}:{dA+2*j+1}], v{t[0]}, s[20:23], s37 offen offset:{32*j}")
        k(f"buffer_load_dwordx2 v[{dB+2*j}:{dB+2*j+1}], v{t[0]}, s[24:27], s37 offen offset:{32*j}")
    k(f"v_lshrrev_b32 v{t[0]}, 1, v{vc}\nv_xor_b32 v{t[0]}, v{t[0]}, v{vh}\nv_lshlrev_b32 v{t[0]}, 4, v{t[0]}")
    k(f"v_lshl_add_u32 v{aA}, v{vc}, 7, v{t[0]}")
    k(f"s_lshl_b32 s37, s28, 11")
    k(f"v_add_u32 v{aB}, s37, v{aA}")
    k(f"v_add_u32 v{aA}, 8192, v{aA}")
    k(f"v_xor_b32 v{aA1}, 64, v{aA}\nv_xor_b32 v{aB1}, 64, v{aB}")
    for i in range(20):
        k(f"v_mov_b32 v{acc+i}, 0")
    stamp(1)
    k("s_waitcnt vmcnt(0)")
    stamp(2)
    k("s_barrier")
    stamp(3)
    k(f"v_sub_f32 v{vomg}, 1.0, v{vg}\nv_cvt_pk_bf16_f32 v{vomg}, v{vomg}, v{vomg}\nv_lshlrev_b32 v{vomg}, 16, v{vomg}")
    xa = t[10]; ya = t[11]
    k(f"s_lshl_b32 s37, s28, 4")
    k(f"v_add_u32 v{t[0]}, s37, v{vc}")
    k(f"v_mul_u32_u24 v{xa}, 160, v{t[0]}\nv_lshl_add_u32 v{xa}, v{vh}, 3, v{xa}\nv_add_u32 v{xa}, {XT}, v{xa}")
    k(f"v_lshlrev_b32 v{ya}, 1, v{t[0]}\nv_lshl_add_u32 v{ya}, v{vh}, 9, v{ya}\nv_add_u32 v{ya}, {YT}, v{ya}")
    for j in range(5):
        k(f"ds_read_b64 v[{fX+2*j}:{fX+2*j+1}], v{xa} offset:{32*j}")
        for r in range(4):
            k(f"ds_read_u16 v{fY+4*j+r}, v{ya} offset:{(16*j+r)*128}")
        if j == 2:
            k("s_waitcnt lgkmcnt(0)")
    k("s_waitcnt lgkmcnt(0)")
    x0, x1, a0, a1, b0, b1, p0, p1 = t[0], t[1], t[2], t[3], t[4], t[5], t[6], t[7]
    for j in range(5):
        for hp in range(2):
            xs = fX + 2*j + hp; das = dA + 2*j + hp; dbs = dB + 2*j + hp
            r0 = 2*hp
            lo16(k, x0, xs); hi16(k, x1, xs)
            lo16(k, a0, das); hi16(k, a1, das)
            lo16(k, b0, dbs); hi16(k, b1, dbs)
            k(f"v_mul_f32 v{a0}, v{x0}, v{a0}\nv_mul_f32 v{a1}, v{x1}, v{a1}")
            k(f"v_mul_f32 v{b0}, v{x0}, v{b0}\nv_mul_f32 v{b1}, v{x1}, v{b1}")
            k(f"v_cvt_pk_bf16_f32 v{p0}, v{a0}, v{a1}\nv_cvt_pk_bf16_f32 v{p1}, v{b0}, v{b1}")
            lo16(k, E1+4*j+r0, p0); hi16(k, E1+4*j+r0+1, p0)
            lo16(k, b0, p1); hi16(k, b1, p1)
            y0 = fY + 4*j + r0; y1 = y0 + 1
            lo16(k, y0, y0); lo16(k, y1, y1)
            k(f"v_add_f32 v{b0}, v{b0}, v{y0}\nv_add_f32 v{b1}, v{b1}, v{y1}")
            k(f"v_cvt_pk_bf16_f32 v{p1}, v{b0}, v{b1}")
            lo16(k, b0, p1); hi16(k, b1, p1)
            k(f"v_mul_f32 v{b0}, v{b0}, v{vomg}\nv_mul_f32 v{b1}, v{b1}, v{vomg}")
            k(f"v_cvt_pk_bf16_f32 v{p1}, v{b0}, v{b1}")
            lo16(k, E2+4*j+r0, p1); hi16(k, E2+4*j+r0+1, p1)
    stamp(4)
    def reads(buf, aa, ab):
        k(f"ds_read_b128 v[{buf}:{buf+3}], v{ab}")
        for j in range(5):
            k(f"ds_read_b128 v[{buf+4+4*j}:{buf+7+4*j}], v{aa} offset:{2048*j}")
    def mfmas(buf):
        for j in range(5):
            k(f"v_mfma_f32_16x16x32_bf16 v[{acc+4*j}:{acc+4*j+3}], v[{buf+4+4*j}:{buf+7+4*j}], v[{buf}:{buf+3}], v[{acc+4*j}:{acc+4*j+3}]")
    for s_ in range(NSL):
        if s_ > 0:
            k("s_barrier")
        reads(fX, aA, aB)
        if s_ > 0:
            mfmas(fY)
        reads(fY, aA1, aB1)
        k("s_waitcnt lgkmcnt(6)")
        mfmas(fX)
        if s_ + 1 < NSL:
            delta = STG if (s_ + 1) % NST else -(NST - 1) * STG
            for r in (aA, aB, aA1, aB1):
                k(f"v_add_u32 v{r}, {delta & 0xffffffff:#x}, v{r}")
        k("s_waitcnt lgkmcnt(0)")
    mfmas(fY)
    stamp(5)
    k("s_barrier")
    k("s_nop 7\ns_nop 1")
    for i in range(20):
        k(f"v_add_f32 v{acc+i}, v{acc+i}, v{E1+i}")
    for i in range(20):
        k(f"v_fma_f32 v{acc+i}, v{vg}, v{acc+i}, v{E2+i}")
    k(f"s_lshl_b32 s37, s28, 4")
    k(f"v_add_u32 v{t[0]}, s37, v{vc}\nv_mul_u32_u24 v{t[0]}, 336, v{t[0]}\nv_lshl_add_u32 v{t[0]}, v{vh}, 4, v{t[0]}")
    for j in range(5):
        k(f"ds_write_b128 v{t[0]}, v[{acc+4*j}:{acc+4*j+3}] offset:{OST + 64*j}")
    k("s_waitcnt lgkmcnt(0)")
    k("s_barrier")
    stamp(6)
    FIN = k.label("fin")
    k(f"s_branch {FIN}")

    k(f"{PROD}:")
    k("s_sub_u32 s29, s28, 4")
    k("v_lshrrev_b32 v2, 4, v1\ns_and_b32 s36, s29, 1\ns_lshl_b32 s36, s36, 2\nv_add_u32 v2, s36, v2\nv_and_b32 v2, 7, v2")
    k("v_and_b32 v3, 7, v1\nv_xor_b32 v2, v2, v3\nv_lshlrev_b32 v2, 4, v2")
    k("v_lshrrev_b32 v3, 3, v1\nv_mul_u32_u24 v3, 2560, v3\nv_add_u32 v2, v2, v3")
    k("s_lshl_b32 s36, s29, 3")
    k("s_add_u32 s40, s32, s36\ns_mul_i32 s40, s40, 2560")
    k(f"s_add_u32 s41, s40, {32*2560}")
    k(f"s_add_u32 s42, s33, s36\ns_mul_i32 s42, s42, 2560\ns_add_u32 s42, s42, {WS_CP}")
    k(f"s_add_u32 s43, s42, {32*2560}\ns_add_u32 s44, s42, {64*2560}")
    k("s_lshl_b32 s45, s29, 10")
    P4 = k.label("p4")
    k(f"s_cmp_ge_u32 s29, 2\ns_cbranch_scc1 {P4}")
    PEND = k.label("pend")
    for n in (5, 4):
        if n == 4: k(f"{P4}:")
        srcs = [(40, 0), (41, 4096), (42, 8192), (43, 12288), (44, 16384)][:n]
        def issue(sl):
            base = (sl % NST) * STG
            for sreg, lo in srcs:
                k(f"s_add_u32 m0, s45, {base + lo}")
                k(f"s_add_u32 s46, s{sreg}, {128*sl}")
                k(f"buffer_load_dwordx4 v2, s[16:19], s46 offen lds")
        for sl in range(NST - 1):
            issue(sl)
        for s_ in range(NSL):
            later = min(NSL - 1, s_ + NST - 2) - s_
            k(f"s_waitcnt vmcnt({later * n})")
            k("s_barrier")
            nx = s_ + NST - 1
            if nx < NSL:
                issue(nx)
        k("s_barrier")
        k("s_barrier")
        if n == 5: k(f"s_branch {PEND}")
    k(f"{PEND}:")
    k(f"{FIN}:")
    k("s_mul_i32 s36, s32, 2560\ns_lshl_b32 s37, s33, 2\ns_add_u32 s36, s36, s37")
    for n in range(3):
        lab = None
        if n == 2:
            lab = k.label("f")
            k(f"s_cmp_ge_u32 s28, 4\ns_cbranch_scc1 {lab}")
        k(f"v_add_u32 v2, {512*n}, v0")
        k("v_mul_u32_u24 v3, 3277, v2\nv_lshrrev_b32 v3, 16, v3")
        k("v_mul_u32_u24 v4, 20, v3\nv_sub_u32 v4, v2, v4")
        k(f"v_mul_u32_u24 v5, 336, v3\nv_lshl_add_u32 v5, v4, 4, v5")
        k(f"ds_read_b128 v[8:11], v5 offset:{OST}")
        k("v_mul_u32_u24 v6, 2560, v3\nv_lshl_add_u32 v6, v4, 4, v6")
        k("s_waitcnt lgkmcnt(0)")
        k("buffer_store_dwordx4 v[8:11], v6, s[12:15], s36 offen")
        k("s_nop 1")
        if lab: k(f"{lab}:")
    if dbg_time:
        k("s_waitcnt vmcnt(0)")
        stamp(7)
        k("s_mov_b32 s62, 256\ns_mov_b32 s63, 0x20000")
        k(f"s_cmp_ge_u32 s2, 8\ns_cbranch_scc1 {END}")
        k(f"s_cmp_lg_u32 s28, 0\ns_cbranch_scc1 {END}")
        k("v_cmp_eq_u32 vcc, 0, v1\ns_and_saveexec_b64 s[50:51], vcc")
        k(f"s_cbranch_execz {END}")
        k("s_lshl_b32 s59, s2, 5\nv_mov_b32 v3, s59")
        for i in range(1, 8):
            k(f"s_sub_u32 s58, s{64+2*i}, s64\nv_mov_b32 v2, s58\nbuffer_store_dword v2, v3, s[60:63], 0 offen offset:{4*i}")
    if prof:
        k("s_waitcnt vmcnt(0)\ns_memrealtime s[92:93]\ns_waitcnt lgkmcnt(0)")
        k(f"s_cmp_lg_u32 s2, 0\ns_cbranch_scc1 {END}\ns_cmp_lg_u32 s28, 0\ns_cbranch_scc1 {END}")
        k("s_mov_b32 s84, s88\ns_mov_b32 s85, s89\ns_mov_b32 s86, 256\ns_mov_b32 s87, 0x20000")
        k(f"v_and_b32 v1, 63, v0\nv_lshlrev_b32 v2, 3, v1\ns_mov_b32 s60, {WS_ST}")
        k("buffer_load_dwordx2 v[4:5], v2, s[16:19], s60 offen\nbuffer_load_dwordx2 v[6:7], v2, s[16:19], s60 offen offset:512\ns_waitcnt vmcnt(0)")
        k("v_min_u32 v4, v4, v6\nv_max_u32 v5, v5, v7")
        for sh in (8, 4, 2, 1):
            k(f"s_nop 1\nv_min_u32_dpp v4, v4, v4 row_ror:{sh} row_mask:0xf bank_mask:0xf\nv_max_u32_dpp v5, v5, v5 row_ror:{sh} row_mask:0xf bank_mask:0xf")
        k("s_nop 1\nv_readlane_b32 s60, v4, 0\nv_readlane_b32 s61, v5, 0\ns_nop 1")
        k("v_mov_b32 v8, s60\nv_mov_b32 v9, s61\nv_mov_b32 v10, s90\nv_mov_b32 v11, s92\nv_mov_b32 v3, 0\ns_mov_b64 exec, 1")
        k("buffer_store_dwordx4 v[8:11], v3, s[84:87], 0 offen")
    k(f"{END}:\ns_endpgm")
    return k

if __name__ == "__main__":
    import sys
    k2 = gen_k2(dbg_time=True)
    build([k2], [k2], sys.argv[1])
```
